```python
import torch

def _softmax(x, axis=-1):
    return torch.softmax(x, dim=axis)
def _gelu(x):
    return torch.nn.functional.gelu(x, approximate="tanh")
def _silu(x):
    return torch.nn.functional.silu(x)
def _sigmoid(x):
    return torch.sigmoid(x)
def _layernorm(x, axis=-1, eps=1e-5):
    m = x.mean(dim=axis, keepdim=True)
    v = x.var(dim=axis, keepdim=True, unbiased=False)
    return (x - m) / torch.sqrt(v + eps)
def _scatter_add(tgt, idx, src, axis=0):
    return tgt.clone().index_add_(axis, idx, src)
def _segment_sum(src, seg, n):
    out = torch.zeros((n,) + src.shape[1:], dtype=src.dtype)
    return out.index_add_(0, seg, src)
def _pad(x, pw):
    flat = tuple(v for pair in reversed(pw) for v in pair)
    return torch.nn.functional.pad(x, flat)

kernel_name = 'gated_mix__sliding_block_cached__swiglu_ffn__decode'

def setup_inputs():

    _w = (lambda a: (lambda t: t.to(torch.bfloat16) if t.is_floating_point() else t)(torch.as_tensor(a)))
    def _A_setup():
        B, Sq, D = 2, 1, 640
        Hq, Hkv, Sk, Dh = 32, 32, 8192, 192
        assert Hq % Hkv == 0, (Hq, Hkv)
        return {
            "x": _w((lambda *s: torch.randn(*s, dtype=torch.bfloat16) * 0.05)(B, Sq, D)),
            "k_cache": _w((lambda *s: torch.randn(*s, dtype=torch.bfloat16) * 6.4)(B, Hkv, Sk, Dh)),
            "v_cache": _w((lambda *s: torch.randn(*s, dtype=torch.bfloat16) * 0.4)(B, Hkv, Sk, Dh)),
            "wq": _w((lambda *s: torch.randn(*s, dtype=torch.bfloat16) * 6.4)(D, Hq * Dh) * (D ** -0.5)),
            "wo": _w((lambda *s: torch.randn(*s, dtype=torch.bfloat16) * 0.4)(Hq * Dh, D) * ((Hq * Dh) ** -0.5)),
        }
    _A_in = _A_setup()

    def _B_setup():
        B, S, D, F = 2, 1, 640, 1536
        return {
            "x": _w((lambda *s: torch.randn(*s, dtype=torch.bfloat16) * 0.05)(B, S, D)),
            "w_gate": _w((lambda *s: torch.randn(*s, dtype=torch.bfloat16) * 0.05)(D, F)),
            "w_up": _w((lambda *s: torch.randn(*s, dtype=torch.bfloat16) * 0.05)(D, F)),
            "w_down": _w((lambda *s: torch.randn(*s, dtype=torch.bfloat16) * 0.05)(F, D)),
        }
    _B_in = _B_setup()

    return {
        "A_x": _A_in["x"],
        "A_k_cache": _A_in["k_cache"],
        "A_v_cache": _A_in["v_cache"],
        "A_wq": _A_in["wq"],
        "A_wo": _A_in["wo"],
        "B_x": _B_in["x"],
        "B_w_gate": _B_in["w_gate"],
        "B_w_up": _B_in["w_up"],
        "B_w_down": _B_in["w_down"],
        "gate_w": _w((lambda *s: torch.randn(*s, dtype=torch.bfloat16) * 0.05)(640) * 16.0),
    }

def reference(A_x, A_k_cache, A_v_cache, A_wq, A_wo, B_x, B_w_gate, B_w_up, B_w_down, gate_w):
    def _A_ref(x, k_cache, v_cache, wq, wo):
        B, Sq, D = x.shape
        Hq, Dh = 32, 192
        Hkv, Sk = k_cache.shape[1], k_cache.shape[2]
        W = min(4096, max(256, Sk // 4))
        rep = Hq // Hkv
        q = (lambda x, *d: x.permute(*d))((x @ wq).reshape(B, Sq, Hq, Dh), 0, 2, 1, 3)
        k = (lambda x, n, axis: torch.repeat_interleave(x, n, dim=axis))(k_cache[:, :, Sk - W:, :], rep, axis=1)
        v = (lambda x, n, axis: torch.repeat_interleave(x, n, dim=axis))(v_cache[:, :, Sk - W:, :], rep, axis=1)
        scores = torch.einsum("bhqd,bhkd->bhqk", q, k) * (Dh ** -0.5)
        p = _softmax(scores, axis=-1)
        o = torch.einsum("bhqk,bhkd->bhqd", p, v)
        return (lambda x, *d: x.permute(*d))(o, 0, 2, 1, 3).reshape(B, Sq, Hq * Dh) @ wo

    def _B_ref(x, w_gate, w_up, w_down):
        g = _silu(x @ w_gate)
        u = x @ w_up
        return (g * u) @ w_down

    x = A_x
    g = _sigmoid((x * gate_w).sum(-1, keepdims=True))
    a = _A_ref(x, A_k_cache, A_v_cache, A_wq, A_wo)
    b = _B_ref(x, B_w_gate, B_w_up, B_w_down)
    return g * a + (1 - g) * b
```

```python
import re

TRANS = ('v_exp_f32', 'v_log_f32', 'v_rcp_f32', 'v_rsq_f32', 'v_sqrt_f32', 'v_sin_f32', 'v_cos_f32')
RMW = ('v_dot2c_', 'v_fmac_', 'v_permlane16_swap', 'v_permlane32_swap')


def regs_of(tok):
    tok = tok.strip()
    neg = tok.lstrip('-')
    if neg.startswith('abs(') or neg.startswith('|'):
        neg = neg.replace('abs(', '').replace(')', '').replace('|', '')
    m = re.fullmatch(r'([vsa])(\d+)', neg)
    if m:
        return [(m.group(1), int(m.group(2)))]
    m = re.fullmatch(r'([vsa])\[(\d+):(\d+)\]', neg)
    if m:
        return [(m.group(1), i) for i in range(int(m.group(2)), int(m.group(3)) + 1)]
    if neg == 'vcc':
        return [('s', 'vcc')]
    if neg == 'exec':
        return [('s', 'exec')]
    return []


class Ins:
    def __init__(self, text):
        self.text = text
        t = text.split(';')[0].strip()
        self.is_label = t.endswith(':')
        self.is_dir = t.startswith('.') or t == ''
        self.op = '' if (self.is_label or self.is_dir) else t.split()[0]
        rest = t[len(self.op):] if self.op else ''
        parts = [p.strip() for p in rest.split(',')] if rest.strip() else []
        ops = []
        for p in parts:
            ops.append(p.split()[0] if p else p)
        self.ops = ops
        op = self.op
        self.mfma = op.startswith('v_mfma')
        self.valu = op.startswith('v_') and not self.mfma
        self.trans = any(op.startswith(x) for x in TRANS)
        self.dot = op.startswith('v_dot')
        self.dpp = self.valu and bool(re.search(r'quad_perm|row_ror|row_shr|row_shl|row_mirror|row_half_mirror|row_bcast|row_newbcast', t))
        self.perml = op.startswith('v_permlane')
        self.vmem = op.startswith('buffer_') or op.startswith('global_')
        self.ds = op.startswith('ds_')
        self.store = (self.vmem and ('store' in op or 'atomic' in op))
        self.wide_store = self.vmem and 'store' in op and ('x3' in op or 'x4' in op)
        self.rdlane = op.startswith('v_readlane') or op.startswith('v_readfirstlane')
        R = [regs_of(o) for o in ops]
        w, r = [], []
        self.srcc = []
        self.srcab = []
        self.store_data = []
        if self.mfma:
            w = R[0]
            self.srcab = R[1] + R[2]
            self.srcc = R[3] if len(R) > 3 else []
            r = self.srcab + self.srcc
        elif self.valu:
            if op.startswith('v_permlane'):
                w = R[0] + R[1]
                r = R[0] + R[1]
            elif re.match(r'v_(add|sub|subrev|addc|subb)_co_', op):
                w = R[0] + R[1]
                r = sum(R[2:], [])
            else:
                w = R[0]
                r = sum(R[1:], [])
                if any(op.startswith(x) for x in RMW) or self.dpp:
                    r = r + R[0]
                if op.startswith('v_cndmask') and len(R) == 3:
                    r = r + [('s', 'vcc')]
        elif self.vmem:
            if 'store' in op:
                r = sum(R, [])
                self.store_data = R[0] if op.startswith('buffer_') else R[1]
            elif op in ('buffer_wbl2', 'buffer_inv'):
                pass
            else:
                w = R[0]
                r = sum(R[1:], [])
        elif self.ds:
            if 'write' in op:
                r = sum(R, [])
            else:
                w = R[0]
                r = sum(R[1:], [])
        elif op.startswith('s_'):
            if op.startswith('s_cmp') or op.startswith('s_cbranch') or op in ('s_waitcnt', 's_nop', 's_barrier', 's_branch', 's_endpgm', 's_sleep', 's_setprio'):
                r = sum(R, [])
            elif R:
                w = R[0]
                r = sum(R[1:], [])
        self.w = set(w)
        self.r = set(r)

    def states(self):
        if self.is_label or self.is_dir:
            return 0
        if self.op == 's_nop':
            return int(self.ops[0], 0) + 1
        return 1


def need(p, c):
    n = 0
    vw = {x for x in p.w if x[0] in 'va'}
    sw = {x for x in p.w if x[0] == 's'}
    if p.valu:
        hit = vw & c.r
        if hit:
            if c.dpp or c.perml or c.mfma:
                n = max(n, 2)
            if c.rdlane:
                n = max(n, 1)
            if p.trans and not c.trans:
                n = max(n, 1)
        if p.dot and (vw & (c.r | c.w)):
            same_acc = c.op == p.op and not (vw & set(sum([regs_of(o) for o in c.ops[1:]], [])))
            if not same_acc:
                n = max(n, 3)
        if sw & c.r:
            if c.vmem:
                n = max(n, 5)
            elif c.valu:
                n = max(n, 4 if c.rdlane else 2)
    if p.mfma:
        if c.mfma:
            if vw & set(c.srcab):
                n = max(n, 8)
            if vw & set(c.srcc) and set(c.srcc) != vw:
                n = max(n, 6)
        elif vw & (c.r | c.w):
            n = max(n, 8)
        if c.valu and set(p.srcc) & c.w:
            n = max(n, 3)
    if p.wide_store and set(p.store_data) & c.w:
        n = max(n, 2 if c.valu else 1)
    return n


class Asm:
    def __init__(self):
        self.lines = []
        self.vm = []
        self.pads = 0

    def __call__(self, text):
        for ln in text.strip('\n').split('\n'):
            ln = ln.strip()
            if ln:
                self._one(ln)

    def _one(self, ln):
        ins = Ins(ln)
        if not (ins.is_label or ins.is_dir):
            dist, worst = 0, 0
            for p in reversed(self.lines[-40:]):
                if p.is_label or p.is_dir:
                    continue
                worst = max(worst, need(p, ins) - dist)
                dist += p.states()
                if dist >= 12:
                    break
            if worst > 0:
                self.lines.append(Ins('s_nop %d' % (worst - 1)))
                self.pads += 1
        self.lines.append(ins)

    def vmem(self, text, tag, counted=True):
        self(text)
        self.vm.append((tag, counted))

    def after(self, tag):
        idx = max(i for i, (t, _) in enumerate(self.vm) if t == tag)
        return sum(1 for (_, c) in self.vm[idx + 1:] if c)

    def wait_vm(self, tag, extra=''):
        n = min(self.after(tag), 63)
        self('s_waitcnt vmcnt(%d)%s' % (n, extra))

    def text(self):
        out = []
        for i in self.lines:
            out.append(i.text if (i.is_label or i.is_dir) else '    ' + i.text)
        return '\n'.join(out) + '\n'
```

```python
import struct, sys, argparse
from asmlib import Asm

NAME = 'gated_mix__sliding_block_cached__swiglu_ffn__decode'

def f2u(x):
    return struct.unpack('<I', struct.pack('<f', x))[0]

LOG2E = f2u(1.4426950408889634)
SCALE = f2u(192 ** -0.5)
TAGSTEP = 0x9E3779B9

WS_H0 = 0x10000
WS_ML = 0xD0000
WS_H1 = 0xE0000
WS_H2 = 0x120000
WS_ST = 0x180000
WS_SIZE = 0x200000
L_P, L_QF, L_G, L_MX, L_LS, L_OP, L_YP, L_END = 0, 18432, 19968, 20000, 20032, 20480, 28672, 36864

HEADER = """; Kernarg layout for this problem (104 bytes, ptrs only, base s[0:1]):
"""

def K(g, t, d=0): return 16 + g * 12 + t * 4 + d
def V(g, t, d=0): return 112 + g * 12 + t * 4 + d
def r4(n): return 'v[%d:%d]' % (n, n + 3)
def r2(n): return 'v[%d:%d]' % (n, n + 1)
Q, O, S = 208, 220, 232


def build(o):
    a = Asm()
    nt = ' nt' if o.nt else ''
    wnt = ' nt' if o.wnt else ''
    stamps = []

    def stamp(name):
        if not o.stamps:
            return
        k = len(stamps)
        stamps.append(name)
        a('s_memrealtime s[90:91]')
        a('s_waitcnt lgkmcnt(0)')
        a('v_writelane_b32 v254, s90, %d' % k)

    def kload(n):
        g, t = divmod(n, 3)
        a.vmem('buffer_load_dwordx4 %s, v2, s[36:39], %s offen offset:%d%s' % (r4(K(g, t)), 's%d' % (68 + g), t * 128, nt), 'K%d' % n)

    def vload(n):
        g, t = divmod(n, 3)
        a.vmem('buffer_load_dwordx4 %s, v2, s[40:43], %s offen offset:%d%s' % (r4(V(g, t)), 's%d' % (68 + g), t * 128, nt), 'V%d' % n)

    def spin(label):
        a('s_sub_u32 s89, s89, 1')
        a('s_cbranch_scc1 L_end')
        a('s_branch %s' % label)

    def bf16r(dst, src):
        a('v_cvt_pk_bf16_f32 v%d, v%d, v%d' % (dst, src, src))
        a('v_and_b32 v%d, 0xffff0000, v%d' % (dst, dst))

    a('s_cmp_ge_u32 s2, 256')
    a('s_cbranch_scc1 L_end')
    a('s_load_dwordx16 s[8:23], s[0:1], 0')
    a('s_load_dwordx8 s[24:31], s[0:1], 64')
    a('s_load_dwordx2 s[32:33], s[0:1], 96')
    if o.stamps:
        a('s_memrealtime s[90:91]')
        stamps.append('entry')
    a('''
    v_lshrrev_b32 v4, 6, v0
    v_and_b32 v1, 63, v0
    v_readfirstlane_b32 s4, v4
    s_and_b32 s3, s2, 7
    s_lshl_b32 s3, s3, 2
    s_lshr_b32 s5, s2, 6
    s_add_u32 s5, s5, s3
    s_lshr_b32 s6, s2, 3
    s_and_b32 s6, s6, 7
    s_lshr_b32 s7, s6, 2
    s_and_b32 s3, s6, 3
    s_lshl_b32 s34, s7, 5
    s_add_u32 s34, s34, s5
    s_mul_i32 s34, s34, 3145728
    s_mul_i32 s3, s3, 196608
    s_add_u32 s34, s34, s3
    s_add_u32 s34, s34, 2359296
    v_lshrrev_b32 v8, 3, v1
    v_and_b32 v9, 7, v1
    v_mul_u32_u24 v2, 384, v8
    v_lshl_add_u32 v2, v9, 4, v2
    ''')
    wstride, gstride = (3072, 24576) if o.interleave else (24576, 3072)
    a('s_mul_i32 s3, s4, %d' % wstride)
    a('v_add_u32 v2, s3, v2')
    for g in range(8):
        a('s_mov_b32 s%d, %d' % (68 + g, g * gstride))
    a('s_mov_b32 s38, 196608\ns_mov_b32 s39, 0x20000\ns_mov_b32 s42, 196608\ns_mov_b32 s43, 0x20000')
    a('s_mov_b32 s54, %d\ns_mov_b32 s55, 0x20000' % WS_SIZE)
    a('s_mov_b32 s89, %d' % o.spin)
    a('s_waitcnt lgkmcnt(0)')
    if o.stamps:
        a('v_writelane_b32 v254, s90, 0')
    a('''
    s_add_u32 s36, s10, s34
    s_addc_u32 s37, s11, 0
    s_and_b32 s37, s37, 0xffff
    ''')
    kpos = 0
    for n in range(o.k1):
        kload(kpos); kpos += 1
    a('''
    s_mov_b32 s52, s32
    s_and_b32 s53, s33, 0xffff
    ''')
    a.vmem('buffer_load_dword v3, off, s[52:55], 0 sc1', 'E')
    a('''
    s_mul_i32 s3, s6, 80
    s_mul_i32 s35, s4, 10
    s_add_u32 s35, s35, s3
    s_lshl_b32 s3, s35, 1
    s_add_u32 s60, s8, s3
    s_addc_u32 s61, s9, 0
    s_load_dwordx4 s[76:79], s[60:61], 0
    s_load_dword s80, s[60:61], 16
    s_load_dwordx4 s[84:87], s[60:61], 1280
    s_load_dword s88, s[60:61], 1296
    s_mul_i32 s3, s35, 12288
    s_mul_i32 s62, s5, 384
    s_add_u32 s3, s3, s62
    s_add_u32 s14, s14, s3
    s_addc_u32 s15, s15, 0
    s_mul_i32 s3, s35, 3072
    s_mul_i32 s62, s5, 96
    s_add_u32 s3, s3, s62
    s_add_u32 s20, s20, s3
    s_addc_u32 s21, s21, 0
    s_sub_u32 s20, s20, 384
    s_subb_u32 s21, s21, 0
    s_add_u32 s22, s22, s3
    s_addc_u32 s23, s23, 0
    s_sub_u32 s22, s22, 480
    s_subb_u32 s23, s23, 0
    v_mov_b32 v170, s14
    v_mov_b32 v171, s15
    v_mov_b32 v172, 0x3000
    v_mov_b32 v173, 0
    s_mov_b32 exec_lo, 0xff000000
    v_mov_b32 v170, s20
    v_mov_b32 v171, s21
    v_mov_b32 v172, 0xc00
    s_mov_b32 exec_lo, 0xc0000000
    v_mov_b32 v170, s22
    v_mov_b32 v171, s23
    s_mov_b32 exec_lo, -1
    s_mov_b32 exec_hi, 0xf
    v_lshlrev_b32 v4, 4, v1
    v_add_co_u32 v170, vcc, v170, v4
    v_addc_co_u32 v171, vcc, 0, v171, vcc
    ''')
    for row in range(10):
        a.vmem('global_load_dwordx4 %s, v[170:171], off%s' % (r4(112 + row * 4), wnt), 'W%d' % row)
        if row < 9:
            a('v_lshl_add_u64 v[170:171], v[172:173], 0, v[170:171]')
    a('s_mov_b64 exec, -1')
    a('''
    s_cmp_lg_u32 s4, 3
    s_cbranch_scc1 L_nogate_ld
    s_mov_b32 s60, s8
    s_and_b32 s61, s9, 0xffff
    s_mov_b32 s62, 2560
    s_mov_b32 s63, 0x20000
    s_mov_b32 s64, s26
    s_and_b32 s65, s27, 0xffff
    s_mov_b32 s66, 1280
    s_mov_b32 s67, 0x20000
    v_lshlrev_b32 v4, 4, v1
    v_lshlrev_b32 v5, 2, v1
    ''')
    a.vmem('buffer_load_dwordx4 v[176:179], v4, s[60:63], 0 offen', 'G', False)
    a.vmem('buffer_load_dwordx4 v[180:183], v4, s[60:63], 0 offen offset:1280', 'G', False)
    a.vmem('buffer_load_dwordx4 v[184:187], v4, s[64:67], 0 offen', 'G', False)
    a.vmem('buffer_load_dword v188, v5, s[60:63], 0 offen offset:1024', 'G', False)
    a.vmem('buffer_load_dword v189, v5, s[60:63], 0 offen offset:2304', 'G', False)
    a.vmem('buffer_load_dword v190, v5, s[64:67], 0 offen offset:1024', 'G', False)
    a('L_nogate_ld:')
    for n in range(o.k2):
        kload(kpos); kpos += 1
    a('''
    s_add_u32 s40, s12, s34
    s_addc_u32 s41, s13, 0
    s_and_b32 s41, s41, 0xffff
    s_mul_i32 s3, s5, 245760
    s_mul_i32 s62, s6, 160
    s_add_u32 s3, s3, s62
    s_add_u32 s44, s16, s3
    s_addc_u32 s45, s17, 0
    s_and_b32 s45, s45, 0xffff
    s_sub_u32 s46, 245760, s62
    s_mov_b32 s47, 0x20000
    s_mul_i32 s3, s5, 61440
    s_add_u32 s3, s3, s62
    s_add_u32 s48, s24, s3
    s_addc_u32 s49, s25, 0
    s_and_b32 s49, s49, 0xffff
    s_sub_u32 s50, 61440, s62
    s_mov_b32 s51, 0x20000
    s_mov_b32 s56, s28
    s_and_b32 s57, s29, 0xffff
    s_mov_b32 s58, 2560
    s_mov_b32 s59, 0x20000
    s_mov_b32 s92, 0x05040100
    s_mov_b32 s93, 0x07060302
    s_lshl_b32 s94, s5, 3
    s_add_u32 s94, s94, s6
    ''')
    a('''
    v_lshlrev_b32 v174, 5, v1
    s_mul_i32 s3, s4, 2304
    v_add_u32 v174, s3, v174
    v_add_u32 v175, 768, v174
    s_mov_b32 exec_lo, 0xff000000
    v_add_u32 v174, 768, v174
    v_add_u32 v175, 384, v175
    s_mov_b32 exec_lo, -1
    ''')
    for i in range(16):
        a('v_mov_b32 v%d, 0' % (152 + i))
    a('s_waitcnt lgkmcnt(0)')
    stamp('issued0')
    for i in range(5):
        a.wait_vm('W%d' % (2 * i + 1))
        x0, x1 = 's%d' % (76 + i), 's%d' % (84 + i)
        for d in range(4):
            t0 = 168 if d % 2 == 0 else 192
            ra, rb = 112 + (2 * i) * 4 + d, 112 + (2 * i + 1) * 4 + d
            a('v_perm_b32 v%d, v%d, v%d, s92' % (t0, rb, ra))
            a('v_perm_b32 v%d, v%d, v%d, s93' % (t0 + 1, rb, ra))
            a('v_dot2c_f32_bf16 v%d, %s, v%d' % (152 + 2 * d, x0, t0))
            a('v_dot2c_f32_bf16 v%d, %s, v%d' % (160 + 2 * d, x1, t0))
            a('v_dot2c_f32_bf16 v%d, %s, v%d' % (153 + 2 * d, x0, t0 + 1))
            a('v_dot2c_f32_bf16 v%d, %s, v%d' % (161 + 2 * d, x1, t0 + 1))
    a('v_add_u32 v3, 0x%x, v3' % TAGSTEP)
    a('''
    s_mov_b32 exec_hi, 0xf
    ds_write_b128 v174, v[152:155] offset:%d
    ds_write_b128 v174, v[156:159] offset:%d
    ds_write_b128 v175, v[160:163] offset:%d
    ds_write_b128 v175, v[164:167] offset:%d
    s_mov_b32 exec_hi, -1
    s_waitcnt lgkmcnt(0)
    s_barrier
    ''' % (L_P, L_P + 16, L_P, L_P + 16))
    stamp('bar1')
    a('''
    s_cmp_gt_u32 s4, 3
    s_cbranch_scc1 L_after_pub0
    s_cmp_eq_u32 s4, 3
    s_cbranch_scc1 L_gate
    s_mul_i32 s3, s4, 768
    v_lshl_add_u32 v4, v1, 2, s3
    ''')
    for n in range(0, 24, 2):
        offs = [(m // 3) * 9 + (m % 3) for m in (n, n + 1)]
        a('ds_read2st64_b32 %s, v4 offset0:%d offset1:%d' % (r2(112 + n), offs[0], offs[1]))
    a('''
    s_mul_i32 s3, s94, 3072
    s_lshl_b32 s62, s4, 10
    s_add_u32 s3, s3, s62
    s_add_u32 s3, s3, %d
    v_lshlrev_b32 v5, 4, v1
    v_mov_b32 v139, v3
    s_waitcnt lgkmcnt(0)
    ''' % WS_H0)
    for base in (0, 6, 12, 18):
        for k in range(3):
            a('v_add_f32 v%d, v%d, v%d' % (112 + base + k, 112 + base + k, 112 + base + 3 + k))
    for base in (0, 12):
        for k in range(3):
            a('v_add_f32 v%d, v%d, v%d' % (112 + base + k, 112 + base + k, 112 + base + 6 + k))
    for k in range(3):
        a('v_add_f32 v%d, v%d, v%d' % (136 + k, 112 + k, 124 + k))
    a.vmem('buffer_store_dwordx4 v[136:139], v5, s[52:55], s3 offen sc1', 'P0', False)
    a('s_nop 1')
    a('s_branch L_after_pub0')
    a('L_gate:')
    a('v_mov_b32 v120, 0\nv_mov_b32 v121, 0\nv_mov_b32 v122, 0\nv_mov_b32 v123, 0')
    for d in range(5):
        gw = 184 + d if d < 4 else 190
        a('v_lshlrev_b32 v112, 16, v%d' % gw)
        a('v_and_b32 v113, 0xffff0000, v%d' % gw)
        for b in range(2):
            x = (176 + 4 * b + d) if d < 4 else 188 + b
            t = 114 + 3 * b
            a('v_lshlrev_b32 v%d, 16, v%d' % (t, x))
            a('v_and_b32 v%d, 0xffff0000, v%d' % (t + 1, x))
            a('v_mul_f32 v%d, v%d, v112' % (t, t))
            a('v_mul_f32 v%d, v%d, v113' % (t + 1, t + 1))
            a('v_cvt_pk_bf16_f32 v%d, v%d, v%d' % (t + 2, t, t + 1))
            a('v_lshlrev_b32 v%d, 16, v%d' % (t, t + 2))
            a('v_and_b32 v%d, 0xffff0000, v%d' % (t + 1, t + 2))
            a('v_add_f32 v%d, v%d, v%d' % (120 + 2 * b, 120 + 2 * b, t))
            a('v_add_f32 v%d, v%d, v%d' % (121 + 2 * b, 121 + 2 * b, t + 1))
    a('''
    v_add_f32 v120, v120, v121
    v_add_f32 v122, v122, v123
    v_permlane32_swap_b32 v120, v122
    v_add_f32 v120, v120, v122
    v_mov_b32 v121, v120
    v_permlane16_swap_b32 v120, v121
    v_add_f32 v120, v120, v121
    v_add_f32_dpp v120, v120, v120 row_ror:8 row_mask:0xf bank_mask:0xf
    v_add_f32_dpp v120, v120, v120 row_ror:4 row_mask:0xf bank_mask:0xf
    v_add_f32_dpp v120, v120, v120 quad_perm:[2,3,0,1] row_mask:0xf bank_mask:0xf
    v_add_f32_dpp v120, v120, v120 quad_perm:[1,0,3,2] row_mask:0xf bank_mask:0xf
    ''')
    bf16r(120, 120)
    a('''
    v_mul_f32 v120, 0x%x, v120
    v_exp_f32 v120, v120
    v_add_f32 v120, 1.0, v120
    v_rcp_f32 v120, v120
    ''' % (LOG2E | 0x80000000))
    bf16r(120, 120)
    a('v_sub_f32 v121, 1.0, v120')
    bf16r(121, 121)
    a('''
    v_lshrrev_b32 v4, 5, v1
    v_lshlrev_b32 v4, 3, v4
    s_mov_b32 exec_lo, 1
    s_mov_b32 exec_hi, 1
    ds_write_b64 v4, v[120:121] offset:%d
    s_mov_b64 exec, -1
    s_waitcnt lgkmcnt(0)
    ''' % L_G)
    a('L_after_pub0:')
    stamp('pub0')
    while kpos < 24:
        kload(kpos); kpos += 1
    a('''
    v_mul_u32_u24 v10, 3072, v8
    s_lshl_b32 s3, s4, 7
    v_lshl_add_u32 v11, v9, 4, s3
    v_add_u32 v10, v10, v11
    s_mul_i32 s95, s5, 24576
    s_add_u32 s95, s95, %d
    s_lshl_b32 s3, s7, 10
    s_add_u32 s96, s95, s3
    ''' % WS_H0)
    a.vmem('buffer_load_dwordx4 v[240:243], v10, s[52:55], s96 offen sc1', 'GQ')
    a.vmem('buffer_load_dwordx4 v[244:247], v10, s[52:55], s95 offen offset:2048 sc1', 'GF')
    vpos = 0
    for n in range(o.v1):
        vload(vpos); vpos += 1
    a('''
    v_and_b32 v12, 1, v9
    v_lshlrev_b32 v12, 4, v12
    v_mov_b32 v13, 0xffff
    v_lshlrev_b32 v13, v12, v13
    v_lshrrev_b32 v12, 1, v9
    ''')
    for r in range(4):
        a('v_cmp_eq_u32 vcc, %d, v12' % r)
        a('v_cndmask_b32 v%d, 0, v13, vcc' % (4 + r))
    a('''
    v_lshrrev_b32 v12, 5, v1
    v_mul_u32_u24 v12, 768, v12
    v_bfe_u32 v13, v1, 4, 1
    v_and_b32 v14, 8, v1
    v_cmp_ne_u32 vcc, 0, v14
    v_cndmask_b32 v13, v13, 2, vcc
    v_lshl_add_u32 v12, v13, 8, v12
    v_lshl_add_u32 v12, v9, 2, v12
    s_lshl_b32 s3, s4, 5
    v_add_u32 v12, s3, v12
    ''')
    for g in range(8):
        a('v_mov_b32 v%d, 0' % (S + g))
    stamp('issued1')
    a.wait_vm('GF')
    a('L_chk0:')
    a('''
    v_cmp_ne_u32 vcc, v243, v3
    v_cmp_ne_u32 s[98:99], v247, v3
    s_or_b64 vcc, vcc, s[98:99]
    s_cbranch_vccz L_ok0
    buffer_load_dwordx4 v[240:243], v10, s[52:55], s96 offen sc1
    buffer_load_dwordx4 v[244:247], v10, s[52:55], s95 offen offset:2048 sc1
    s_waitcnt vmcnt(0)
    ''')
    spin('L_chk0')
    a('L_ok0:')
    stamp('gath0')
    a('''
    v_permlane32_swap_b32 v240, v244
    v_permlane32_swap_b32 v241, v245
    v_permlane32_swap_b32 v242, v246
    v_add_f32 v240, v240, v244
    v_add_f32 v241, v241, v245
    v_add_f32 v242, v242, v246
    v_mov_b32 v243, v242
    v_permlane16_swap_b32 v240, v241
    v_permlane16_swap_b32 v242, v243
    v_add_f32 v240, v240, v241
    v_add_f32 v242, v242, v243
    v_add_f32_dpp v244, v240, v240 row_ror:8 row_mask:0xf bank_mask:0x3
    v_add_f32_dpp v244, v242, v242 row_ror:8 row_mask:0xf bank_mask:0xc
    ds_write_b32 v12, v244 offset:%d
    v_lshlrev_b32 v13, 5, v9
    v_min_u32 v14, 5, v8
    s_mul_i32 s3, s4, 6
    v_add_u32 v14, s3, v14
    v_bfe_u32 v15, v1, 2, 1
    v_mul_u32_u24 v11, 96, v15
    v_add_lshl_u32 v14, v14, v11, 2
    v_lshlrev_b32 v15, 3, v15
    s_waitcnt lgkmcnt(0)
    s_barrier
    ''' % L_QF)
    qt = [(240, 244), (220, 224), (228, 248)]
    for t in range(3):
        a('ds_read_b128 %s, v13 offset:%d' % (r4(qt[t][0]), L_QF + t * 256))
        a('ds_read_b128 %s, v13 offset:%d' % (r4(qt[t][1]), L_QF + t * 256 + 16))
    a('ds_read_b32 v10, v14 offset:%d' % (L_QF + 768))
    a('ds_read_b32 v11, v14 offset:%d' % (L_QF + 768 + 192))
    a('ds_read_b64 v[252:253], v15 offset:%d' % L_G)
    a('s_waitcnt lgkmcnt(0)')
    for t in range(3):
        for d in range(4):
            src = qt[t][d // 2] + (d % 2) * 2
            a('v_cvt_pk_bf16_f32 v%d, v%d, v%d' % (Q + t * 4 + d, src, src + 1))
    stamp('bar2')
    bf16r(10, 10)
    bf16r(11, 11)
    a('''
    v_mul_f32 v12, 0x%x, v10
    v_exp_f32 v12, v12
    v_add_f32 v12, 1.0, v12
    v_rcp_f32 v12, v12
    v_mul_f32 v10, v10, v12
    ''' % (LOG2E | 0x80000000))
    bf16r(10, 10)
    a('v_mul_f32 v10, v10, v11')
    bf16r(10, 10)
    a('v_mul_f32 v10, v10, v253')
    a('v_mov_b32 v11, v252')
    rem = 24 - vpos
    slots = 24
    done = 0
    slot = 0
    for g0 in (0, 4):
        for t in range(3):
            for d in range(4):
                for gg in range(4):
                    a('v_dot2c_f32_bf16 v%d, v%d, v%d' % (S + g0 + gg, K(g0 + gg, t, d), Q + t * 4 + d))
                slot += 1
                want = rem * slot // slots
                while done < want:
                    vload(vpos); vpos += 1; done += 1
    assert vpos == 24

    def wo_loads():
        a('''
        v_lshlrev_b32 v12, 3, v8
        s_lshr_b32 s3, s4, 2
        s_lshl_b32 s3, s3, 1
        s_and_b32 s62, s4, 1
        s_add_u32 s3, s3, s62
        s_and_b32 s62, s4, 2
        s_lshl_b32 s62, s62, 1
        s_add_u32 s3, s3, s62
        v_add_u32 v12, s3, v12
        v_mul_u32_u24 v12, 1280, v12
        v_lshl_add_u32 v13, v9, 2, v12
        v_lshl_add_u32 v12, v9, 4, v12
        s_mov_b32 s97, 81920
        s_mov_b32 s100, 163840
        ''')
        for t, so in enumerate(('0', 's97', 's100')):
            a.vmem('buffer_load_dwordx4 %s, v12, s[44:47], %s offen' % (r4(48 + 4 * t), so), 'WO')
            a.vmem('buffer_load_dword v%d, v13, s[44:47], %s offen offset:128' % (64 + t, so), 'WO')
        a('''
        s_mul_i32 s3, s4, 6
        v_add_u32 v12, s3, v8
        v_mul_u32_u24 v12, 1280, v12
        v_cmp_lt_u32 vcc, 5, v8
        v_cndmask_b32 v12, v12, 2.0, vcc
        v_lshl_add_u32 v13, v9, 2, v12
        v_lshl_add_u32 v12, v9, 4, v12
        ''')
        a.vmem('buffer_load_dwordx4 v[60:63], v12, s[48:51], 0 offen', 'WO')
        a.vmem('buffer_load_dword v67, v13, s[48:51], 0 offen offset:128', 'WO')

    if o.wo_early:
        wo_loads()
    stamp('qk')
    for ctl in ('quad_perm:[1,0,3,2]', 'quad_perm:[2,3,0,1]', 'row_half_mirror'):
        for g in range(8):
            a('v_add_f32_dpp v%d, v%d, v%d %s row_mask:0xf bank_mask:0xf' % (S + g, S + g, S + g, ctl))
    for g in range(0, 8, 2):
        a('v_cvt_pk_bf16_f32 v%d, v%d, v%d' % (240 + g // 2, S + g, S + g + 1))
    for g in range(0, 8, 2):
        a('v_lshlrev_b32 v%d, 16, v%d' % (S + g, 240 + g // 2))
        a('v_and_b32 v%d, 0xffff0000, v%d' % (S + g + 1, 240 + g // 2))
    for g in range(8):
        a('v_mul_f32 v%d, 0x%x, v%d' % (S + g, SCALE, S + g))
    for g in range(0, 8, 2):
        a('v_cvt_pk_bf16_f32 v%d, v%d, v%d' % (240 + g // 2, S + g, S + g + 1))
    for g in range(0, 8, 2):
        a('v_lshlrev_b32 v%d, 16, v%d' % (S + g, 240 + g // 2))
        a('v_and_b32 v%d, 0xffff0000, v%d' % (S + g + 1, 240 + g // 2))
    a('''
    v_max3_f32 v240, v232, v233, v234
    v_max3_f32 v241, v235, v236, v237
    v_max3_f32 v240, v240, v238, v239
    v_max_f32 v240, v240, v241
    v_max_f32_dpp v240, v240, v240 row_ror:8 row_mask:0xf bank_mask:0xf
    v_mov_b32 v241, v240
    v_permlane16_swap_b32 v240, v241
    v_max_f32 v240, v240, v241
    v_mov_b32 v241, v240
    v_permlane32_swap_b32 v240, v241
    v_max_f32 v240, v240, v241
    s_lshl_b32 s3, s4, 2
    v_mov_b32 v14, s3
    v_mov_b32 v15, 0
    s_mov_b64 exec, 1
    ds_write_b32 v14, v240 offset:%d
    s_mov_b64 exec, -1
    s_waitcnt lgkmcnt(0)
    s_barrier
    ds_read_b128 v[240:243], v15 offset:%d
    ds_read_b128 v[244:247], v15 offset:%d
    s_waitcnt lgkmcnt(0)
    v_max3_f32 v240, v240, v241, v242
    v_max3_f32 v244, v243, v244, v245
    v_max3_f32 v240, v240, v246, v247
    v_max_f32 v248, v240, v244
    ''' % (L_MX, L_MX, L_MX + 16))
    for g in range(8):
        a('v_sub_f32 v%d, v%d, v248' % (S + g, S + g))
    for g in range(8):
        a('v_mul_f32 v%d, 0x%x, v%d' % (S + g, LOG2E, S + g))
    for g in range(8):
        a('v_exp_f32 v%d, v%d' % (S + g, S + g))
    a('''
    v_add_f32 v240, v232, v233
    v_add_f32 v241, v234, v235
    v_add_f32 v242, v236, v237
    v_add_f32 v243, v238, v239
    v_add_f32 v240, v240, v241
    v_add_f32 v242, v242, v243
    v_add_f32 v240, v240, v242
    v_add_f32_dpp v240, v240, v240 row_ror:8 row_mask:0xf bank_mask:0xf
    v_mov_b32 v241, v240
    v_permlane16_swap_b32 v240, v241
    v_add_f32 v240, v240, v241
    v_mov_b32 v241, v240
    v_permlane32_swap_b32 v240, v241
    v_add_f32 v240, v240, v241
    s_mov_b64 exec, 1
    ds_write_b32 v14, v240 offset:%d
    s_mov_b64 exec, -1
    ''' % L_LS)
    for g in range(8):
        a('v_cvt_pk_bf16_f32 v%d, v%d, v%d' % (S + g, S + g, S + g))
    a('s_waitcnt lgkmcnt(0)')
    a('s_barrier')
    a('''
    s_cmp_lg_u32 s4, 0
    s_cbranch_scc1 L_noml
    ds_read_b128 v[240:243], v15 offset:%d
    ds_read_b128 v[244:247], v15 offset:%d
    s_lshl_b32 s3, s94, 4
    s_add_u32 s3, s3, %d
    v_mov_b32 v250, 0
    v_mov_b32 v251, v3
    s_waitcnt lgkmcnt(0)
    v_add_f32 v240, v240, v241
    v_add_f32 v242, v242, v243
    v_add_f32 v244, v244, v245
    v_add_f32 v246, v246, v247
    v_add_f32 v240, v240, v242
    v_add_f32 v244, v244, v246
    v_add_f32 v249, v240, v244
    s_mov_b64 exec, 1
    ''' % (L_LS, L_LS + 16, WS_ML))
    a.vmem('buffer_store_dwordx4 v[248:251], off, s[52:55], s3 sc1', 'ML', False)
    a('s_mov_b64 exec, -1')
    a('L_noml:')
    if not o.wo_early:
        wo_loads()
    for g in range(8):
        for r in range(4):
            a('v_and_b32 v%d, v%d, v%d' % (16 + g * 4 + r, S + g, 4 + r))
    a('''
    v_lshlrev_b32 v4, 4, v1
    s_lshl_b32 s3, s4, 10
    v_add_u32 v5, s3, v4
    v_lshlrev_b32 v6, 4, v9
    v_lshlrev_b32 v7, 10, v9
    v_lshl_add_u32 v7, v8, 4, v7
    s_lshl_b32 s3, s4, 7
    v_add_u32 v7, s3, v7
    s_lshl_b32 s95, s5, 7
    s_add_u32 s95, s95, %d
    s_lshl_b32 s96, s5, 13
    s_add_u32 s96, s96, %d
    s_lshl_b32 s62, s94, 10
    s_add_u32 s62, s62, %d
    ''' % (WS_ML, WS_H1, WS_H1))
    for i in range(20):
        a('v_mov_b32 v%d, 0' % (88 + i))
    stamp('soft')
    for g in range(8):
        a.wait_vm('V%d' % (3 * g + 2))
        for t in range(3):
            c = '0' if g == 0 else r4(O + 4 * t)
            a('v_mfma_f32_16x16x32_bf16 %s, %s, %s, %s' % (r4(O + 4 * t), r4(16 + 4 * g), r4(V(g, t)), c))
    a.vmem('buffer_load_dwordx4 v[248:251], v6, s[52:55], s95 offen sc1', 'GML')
    stamp('pv')
    for t in range(3):
        a('v_permlane32_swap_b32 v%d, v%d' % (O + 4 * t, O + 4 * t + 2))
        a('v_permlane32_swap_b32 v%d, v%d' % (O + 4 * t + 1, O + 4 * t + 3))
    for t in range(3):
        a('v_add_f32_dpp v%d, v%d, v%d row_ror:8 row_mask:0xf bank_mask:0x3' % (240 + t, O + 4 * t + 2, O + 4 * t))
    for t in range(3):
        a('v_add_f32_dpp v%d, v%d, v%d row_ror:8 row_mask:0xf bank_mask:0xc' % (240 + t, O + 4 * t + 1, O + 4 * t + 3))
    a('''
    ds_write_b128 v5, v[240:243] offset:%d
    s_waitcnt lgkmcnt(0)
    s_barrier
    s_cmp_lg_u32 s4, 0
    s_cbranch_scc1 L_nopub1
    ''' % L_OP)
    for w in range(8):
        a('ds_read_b128 %s, v4 offset:%d' % (r4(112 + 4 * w), L_OP + w * 1024))
    a('v_mov_b32 v147, v3')
    a('s_waitcnt lgkmcnt(0)')
    for base in (0, 8, 16, 24):
        for k in range(3):
            a('v_add_f32 v%d, v%d, v%d' % (112 + base + k, 112 + base + k, 116 + base + k))
    for base in (0, 16):
        for k in range(3):
            a('v_add_f32 v%d, v%d, v%d' % (112 + base + k, 112 + base + k, 120 + base + k))
    for k in range(3):
        a('v_add_f32 v%d, v%d, v%d' % (144 + k, 112 + k, 128 + k))
    a.vmem('buffer_store_dwordx4 v[144:147], v4, s[52:55], s62 offen sc1', 'P1', False)
    a('L_nopub1:')
    a.vmem('buffer_load_dwordx4 v[244:247], v7, s[52:55], s96 offen sc1', 'GO')
    stamp('pub1')
    a.wait_vm('GML')
    a('L_chkml:')
    a('''
    v_cmp_ne_u32 vcc, v251, v3
    s_cbranch_vccz L_okml
    buffer_load_dwordx4 v[248:251], v6, s[52:55], s95 offen sc1
    s_waitcnt vmcnt(0)
    ''')
    spin('L_chkml')
    a('L_okml:')
    a('''
    v_max_f32_dpp v12, v248, v248 quad_perm:[1,0,3,2] row_mask:0xf bank_mask:0xf
    v_max_f32_dpp v12, v12, v12 quad_perm:[2,3,0,1] row_mask:0xf bank_mask:0xf
    v_sub_f32 v12, v248, v12
    v_mul_f32 v12, 0x%x, v12
    v_exp_f32 v12, v12
    v_mul_f32 v13, v12, v249
    v_add_f32_dpp v13, v13, v13 quad_perm:[1,0,3,2] row_mask:0xf bank_mask:0xf
    v_add_f32_dpp v13, v13, v13 quad_perm:[2,3,0,1] row_mask:0xf bank_mask:0xf
    v_rcp_f32 v13, v13
    v_mul_f32 v12, v12, v11
    v_mul_f32 v12, v12, v13
    ''' % LOG2E)
    for pr in range(2):
        for d in range(5):
            ra = (48 + 8 * pr + d) if d < 4 else 64 + 2 * pr
            rb = (52 + 8 * pr + d) if d < 4 else 65 + 2 * pr
            a('v_perm_b32 v%d, v%d, v%d, s92' % (68 + 10 * pr + 2 * d, rb, ra))
            a('v_perm_b32 v%d, v%d, v%d, s93' % (69 + 10 * pr + 2 * d, rb, ra))
    a('s_waitcnt vmcnt(0)')
    a('L_chk1:')
    a('''
    v_cmp_ne_u32 vcc, v247, v3
    s_cbranch_vccz L_ok1
    buffer_load_dwordx4 v[244:247], v7, s[52:55], s96 offen sc1
    s_waitcnt vmcnt(0)
    ''')
    spin('L_chk1')
    a('L_ok1:')
    stamp('gath1')
    for t in range(3):
        a('v_mul_f32 v%d, v%d, v12' % (244 + t, 244 + t))
    for ctl in ('quad_perm:[1,0,3,2]', 'quad_perm:[2,3,0,1]'):
        for t in range(3):
            a('v_add_f32_dpp v%d, v%d, v%d %s row_mask:0xf bank_mask:0xf' % (244 + t, 244 + t, 244 + t, ctl))
    a('''
    v_cvt_pk_bf16_f32 v240, v244, v245
    v_cvt_pk_bf16_f32 v241, v246, v10
    v_mov_b32_dpp v242, v240 row_half_mirror row_mask:0xf bank_mask:0xf
    v_mov_b32_dpp v243, v241 row_half_mirror row_mask:0xf bank_mask:0xf
    ''')
    for n in range(10):
        a('v_dot2c_f32_bf16 v%d, v%d, v240' % (88 + n, 68 + n))
    for n in range(10):
        a('v_dot2c_f32_bf16 v%d, v%d, v242' % (98 + n, 68 + n))
    for n in range(10):
        a('v_dot2c_f32_bf16 v%d, v%d, v241' % (88 + n, 78 + n))
    for n in range(10):
        a('v_dot2c_f32_bf16 v%d, v%d, v243' % (98 + n, 78 + n))
    for n in range(10):
        a('v_permlane32_swap_b32 v%d, v%d' % (88 + n, 98 + n))
    for n in range(10):
        a('v_add_f32 v%d, v%d, v%d' % (88 + n, 88 + n, 98 + n))
    for n in range(5):
        a('v_permlane16_swap_b32 v%d, v%d' % (88 + n, 93 + n))
    for n in range(5):
        a('v_add_f32 v%d, v%d, v%d' % (88 + n, 88 + n, 93 + n))
    a('''
    v_add_f32_dpp v240, v88, v88 row_ror:8 row_mask:0xf bank_mask:0x3
    v_add_f32_dpp v241, v90, v90 row_ror:8 row_mask:0xf bank_mask:0x3
    v_add_f32_dpp v242, v92, v92 row_ror:8 row_mask:0xf bank_mask:0xf
    v_add_f32_dpp v240, v89, v89 row_ror:8 row_mask:0xf bank_mask:0xc
    v_add_f32_dpp v241, v91, v91 row_ror:8 row_mask:0xf bank_mask:0xc
    ds_write_b128 v5, v[240:243] offset:%d
    s_waitcnt lgkmcnt(0)
    s_barrier
    s_cmp_lg_u32 s4, 0
    s_cbranch_scc1 L_wave_done
    ''' % L_YP)
    for w in range(8):
        a('ds_read_b128 %s, v4 offset:%d' % (r4(112 + 4 * w), L_YP + w * 1024))
    a('''
    v_mov_b32 v147, v3
    s_lshl_b32 s3, s6, 15
    s_add_u32 s96, s3, %d
    s_lshl_b32 s3, s5, 10
    s_add_u32 s62, s96, s3
    v_lshrrev_b32 v6, 1, v1
    v_lshlrev_b32 v6, 10, v6
    v_and_b32 v7, 1, v1
    v_lshl_add_u32 v6, v7, 4, v6
    s_lshl_b32 s3, s5, 5
    v_add_u32 v6, s3, v6
    s_waitcnt lgkmcnt(0)
    ''' % WS_H2)
    for base in (0, 8, 16, 24):
        for k in range(3):
            a('v_add_f32 v%d, v%d, v%d' % (112 + base + k, 112 + base + k, 116 + base + k))
    for base in (0, 16):
        for k in range(3):
            a('v_add_f32 v%d, v%d, v%d' % (112 + base + k, 112 + base + k, 120 + base + k))
    for k in range(3):
        a('v_add_f32 v%d, v%d, v%d' % (144 + k, 112 + k, 128 + k))
    a.vmem('buffer_store_dwordx4 v[144:147], v4, s[52:55], s62 offen sc1', 'P2', False)
    a.vmem('buffer_load_dwordx4 v[244:247], v6, s[52:55], s96 offen sc1', 'GY', False)
    stamp('pub2')
    a('''
    s_lshr_b32 s76, s5, 3
    s_and_b32 s76, s76, 1
    s_mul_i32 s76, s76, 5
    s_lshr_b32 s77, s5, 2
    s_and_b32 s77, s77, 1
    s_lshr_b32 s78, s5, 4
    s_lshr_b32 s79, s5, 1
    s_xor_b32 s78, s78, s79
    s_and_b32 s78, s78, 1
    s_mul_i32 s78, s78, 640
    s_mul_i32 s79, s6, 80
    s_add_u32 s78, s78, s79
    s_and_b32 s79, s5, 3
    s_lshl_b32 s79, s79, 1
    s_add_u32 s80, s76, s77
    s_add_u32 s81, s76, 4
    v_add_u32 v8, s79, v7
    v_lshrrev_b32 v9, 5, v1
    v_lshlrev_b32 v9, 1, v9
    v_add_u32 v9, s80, v9
    v_mov_b32 v13, s81
    v_and_b32 v12, 16, v1
    v_cmp_ne_u32 vcc, 0, v12
    v_cndmask_b32 v9, v9, v13, vcc
    v_lshl_add_u32 v12, v8, 3, v9
    v_lshl_add_u32 v13, v8, 1, v9
    v_add_u32 v13, 56, v13
    v_cmp_lt_u32 vcc, 7, v9
    v_cndmask_b32 v12, v12, v13, vcc
    v_add_lshl_u32 v12, s78, v12, 1
    s_mov_b32 s84, 3
    s_cmp_eq_u32 s77, 0
    s_cselect_b32 s85, 0x30003, s84
    s_waitcnt vmcnt(0)
    ''')
    a('L_chk2:')
    a('''
    v_cmp_ne_u32 vcc, v247, v3
    s_cbranch_vccz L_ok2
    buffer_load_dwordx4 v[244:247], v6, s[52:55], s96 offen sc1
    s_waitcnt vmcnt(0)
    ''')
    spin('L_chk2')
    a('L_ok2:')
    stamp('gath2')
    a('''
    v_mov_b32 v247, v246
    v_permlane32_swap_b32 v244, v245
    v_permlane32_swap_b32 v246, v247
    v_add_f32 v244, v244, v245
    v_add_f32 v246, v246, v247
    v_permlane16_swap_b32 v244, v246
    v_add_f32 v244, v244, v246
    v_add_f32_dpp v244, v244, v244 row_ror:8 row_mask:0xf bank_mask:0xf
    v_add_f32_dpp v244, v244, v244 row_ror:4 row_mask:0xf bank_mask:0xf
    v_add_f32_dpp v244, v244, v244 quad_perm:[2,3,0,1] row_mask:0xf bank_mask:0xf
    v_cvt_pk_bf16_f32 v244, v244, v244
    s_mov_b32 exec_lo, s85
    s_mov_b32 exec_hi, 3
    buffer_store_short v244, v12, s[56:59], 0 offen
    s_cmp_lg_u32 s2, 0
    s_cbranch_scc1 L_wave_done
    s_mov_b64 exec, 1
    buffer_store_dword v3, off, s[52:55], 0 sc1
    ''')
    a('L_wave_done:')
    if o.stamps:
        a('s_mov_b64 exec, -1')
        a('s_waitcnt vmcnt(0)')
        stamp('end')
        a('''
        s_lshl_b32 s3, s2, 3
        s_add_u32 s3, s3, s4
        s_lshl_b32 s3, s3, 6
        s_add_u32 s3, s3, %d
        s_getreg_b32 s62, hwreg(HW_REG_XCC_ID)
        v_writelane_b32 v254, s62, 15
        v_lshlrev_b32 v4, 2, v1
        s_mov_b64 exec, 0xffff
        buffer_store_dword v254, v4, s[52:55], s3 offen
        ''' % WS_ST)
    a('L_end:')
    a('s_endpgm')

    body = a.text()
    src = HEADER + '; @launch grid=(256,1,1) block=(512,1,1) lds=%d\n' % L_END
    src += '''.amdgcn_target "amdgcn-amd-amdhsa--gfx950"
.text
.globl {n}_kernel
.p2align 8
.type {n}_kernel,@function
{n}_kernel:
{body}.section .rodata,"a"
.p2align 6
.amdhsa_kernel {n}_kernel
  .amdhsa_next_free_vgpr 256
  .amdhsa_next_free_sgpr 102
  .amdhsa_accum_offset 256
  .amdhsa_group_segment_fixed_size 0
  .amdhsa_kernarg_size 104
  .amdhsa_user_sgpr_count 2
  .amdhsa_user_sgpr_kernarg_segment_ptr 1
  .amdhsa_system_sgpr_workgroup_id_x 1
  .amdhsa_float_denorm_mode_32 3
.end_amdhsa_kernel
'''.format(n=NAME, body=body)
    return src, stamps, a.pads


def parser():
    p = argparse.ArgumentParser()
    p.add_argument('-o', default='cdna_kernels/%s.s' % NAME)
    p.add_argument('--nt', type=int, default=1)
    p.add_argument('--wnt', type=int, default=0)
    p.add_argument('--k1', type=int, default=4)
    p.add_argument('--k2', type=int, default=6)
    p.add_argument('--v1', type=int, default=8)
    p.add_argument('--interleave', type=int, default=0)
    p.add_argument('--wo_early', type=int, default=1)
    p.add_argument('--stamps', type=int, default=0)
    p.add_argument('--spin', type=int, default=200000)
    return p


if __name__ == '__main__':
    o = parser().parse_args()
    src, stamps, pads = build(o)
    open(o.o, 'w').write(src)
    if o.stamps:
        open(o.o + '.stamps', 'w').write(' '.join(stamps))
    print('wrote', o.o, len(src), 'bytes; pads', pads, stamps)
```

```python
import struct, sys, argparse
from asmlib import Asm

NAME = 'gated_mix__sliding_block_cached__swiglu_ffn__decode'

def f2u(x):
    return struct.unpack('<I', struct.pack('<f', x))[0]

LOG2E = f2u(1.4426950408889634)
SCALE = f2u(192 ** -0.5)
TAGSTEP = 0x9E3779B9

WS_H0 = 0x10000
WS_ML = 0xD0000
WS_H1 = 0xE0000
WS_H2 = 0x120000
WS_ST = 0x180000
WS_SIZE = 0x200000
L_P, L_QF, L_G, L_MX, L_LS, L_OP, L_YP, L_END = 0, 18432, 19968, 20032, 20064, 20480, 28672, 36864

HEADER = """; Kernarg layout for this problem (104 bytes, ptrs only, base s[0:1]):
"""

def K(g, t, d=0): return 16 + g * 12 + t * 4 + d
def V(g, t, d=0): return 112 + g * 12 + t * 4 + d
def r4(n): return 'v[%d:%d]' % (n, n + 3)
def r2(n): return 'v[%d:%d]' % (n, n + 1)
Q, O, S = 208, 220, 232


def wrap(body, lds, block=512, vgpr=256, acc=256):
    src = HEADER + '; @launch grid=(256,1,1) block=(%d,1,1) lds=%d\n' % (block, lds)
    src += '''.amdgcn_target "amdgcn-amd-amdhsa--gfx950"
.text
.globl {n}_kernel
.p2align 8
.type {n}_kernel,@function
{n}_kernel:
{body}.section .rodata,"a"
.p2align 6
.amdhsa_kernel {n}_kernel
  .amdhsa_next_free_vgpr {vg}
  .amdhsa_next_free_sgpr 102
  .amdhsa_accum_offset {ac}
  .amdhsa_group_segment_fixed_size 0
  .amdhsa_kernarg_size 104
  .amdhsa_user_sgpr_count 2
  .amdhsa_user_sgpr_kernarg_segment_ptr 1
  .amdhsa_system_sgpr_workgroup_id_x 1
  .amdhsa_float_denorm_mode_32 3
.end_amdhsa_kernel
'''.format(n=NAME, body=body, vg=vgpr, ac=acc)
    return src


def build(o):
    a = Asm()
    nt = ' nt' if o.nt else ''
    wnt = ' nt' if o.wnt else ''
    stamps = []

    def stamp(name):
        if not o.stamps:
            return
        k = len(stamps)
        stamps.append(name)
        a('s_memrealtime s[90:91]')
        a('s_waitcnt lgkmcnt(0)')
        a('v_writelane_b32 v254, s90, %d' % k)

    def kload(n):
        g, t = divmod(n, 3)
        a.vmem('buffer_load_dwordx4 %s, v2, s[36:39], %s offen offset:%d%s' % (r4(K(g, t)), 's%d' % (68 + g), t * 128, nt), 'K%d' % n)

    def vload(n):
        g, t = divmod(n, 3)
        a.vmem('buffer_load_dwordx4 %s, v2, s[40:43], %s offen offset:%d%s' % (r4(V(g, t)), 's%d' % (68 + g), t * 128, nt), 'V%d' % n)

    class Stream:
        def __init__(self):
            self.items = []
            self.n = 0
            self.hooks = {}
        def feed(self, k=1):
            for _ in range(k):
                if self.n < len(self.items):
                    self.items[self.n][1]()
                    if self.n in self.hooks:
                        self.hooks[self.n]()
                    self.n += 1
        def landed(self, i):
            if i >= 0:
                a.wait_vm(self.items[i][0])
        def pace_until(self, last, depth):
            while self.n <= min(last, len(self.items) - 1):
                self.landed(self.n - depth)
                self.feed()
        def pfeed(self, k=1):
            self.pace_until(self.n + k - 1, D)
        def need(self, i, depth):
            self.pace_until(i + depth - 1, depth)
            self.landed(i)
            self.feed(1 if self.n == i + depth else 0)
    st = Stream()

    def wo_load(n):
        t = n // 2
        if t < 3:
            so = ('0', 's97', 's100')[t]
            if n % 2 == 0:
                a.vmem('buffer_load_dwordx4 %s, v108, s[44:47], %s offen%s' % (r4(48 + 4 * t), so, wnt), 'WO%d' % n)
            else:
                a.vmem('buffer_load_dword v%d, v109, s[44:47], %s offen offset:128%s' % (64 + t, so, wnt), 'WO%d' % n)
        elif n == 6:
            a.vmem('buffer_load_dwordx4 v[60:63], v110, s[48:51], 0 offen%s' % wnt, 'WO6')
        else:
            a.vmem('buffer_load_dword v67, v111, s[48:51], 0 offen offset:128%s' % wnt, 'WO7')
    for n in range(24):
        st.items.append(('K%d' % n, (lambda n=n: kload(n))))
    for n in range(24):
        st.items.append(('V%d' % n, (lambda n=n: vload(n))))
    for n in range(8):
        st.items.append(('WO%d' % n, (lambda n=n: wo_load(n))))
    D = o.depth

    def spin(label):
        a('s_sub_u32 s89, s89, 1')
        a('s_cbranch_scc1 L_end')
        a('s_branch %s' % label)

    def bf16r(dst, src):
        a('v_cvt_pk_bf16_f32 v%d, v%d, v%d' % (dst, src, src))
        a('v_and_b32 v%d, 0xffff0000, v%d' % (dst, dst))

    a('s_cmp_ge_u32 s2, 256')
    a('s_cbranch_scc1 L_end')
    a('s_load_dwordx16 s[8:23], s[0:1], 0')
    if o.prio:
        a('s_setprio 3')
    if o.pf == 2:
        a('s_getpc_b64 s[60:61]')
        a('L_pc:')
        a('s_lshr_b32 s3, s2, 3')
        a('s_and_b32 s3, s3, 3')
        a('s_lshl_b32 s3, s3, 12')
        a('v_lshl_add_u32 v4, v0, 6, s3')
        a('v_min_u32 v4, L_end-L_pc, v4')
        a('v_cmp_gt_u32 vcc, 64, v0')
        a('s_and_saveexec_b64 s[98:99], vcc')
        a('s_cbranch_execz L_nopf')
        a.vmem('global_load_dword v200, v4, s[60:61]', 'PF', False)
        a('L_nopf:')
        a('s_mov_b64 exec, -1')
    if o.pf == 1:
        a('s_getpc_b64 s[60:61]')
        a('L_pc:')
        a('v_lshlrev_b32 v4, 6, v0')
        a('v_min_u32 v4, L_end-L_pc, v4')
        a.vmem('global_load_dword v200, v4, s[60:61]', 'PF')
    a('s_load_dwordx8 s[24:31], s[0:1], 64')
    a('s_load_dwordx2 s[32:33], s[0:1], 96')
    if o.stamps:
        a('s_memrealtime s[90:91]')
        a('v_mov_b32 v254, 0')
        stamps.append('entry')
    a('''
    v_lshrrev_b32 v4, 6, v0
    v_and_b32 v1, 63, v0
    v_readfirstlane_b32 s4, v4
    s_and_b32 s3, s2, 7
    s_lshl_b32 s3, s3, 2
    s_lshr_b32 s5, s2, 6
    s_add_u32 s5, s5, s3
    s_lshr_b32 s6, s2, 3
    s_and_b32 s6, s6, 7
    s_lshr_b32 s7, s6, 2
    s_and_b32 s3, s6, 3
    s_lshl_b32 s34, s7, 5
    s_add_u32 s34, s34, s5
    s_mul_i32 s34, s34, 3145728
    s_mul_i32 s3, s3, 196608
    s_add_u32 s34, s34, s3
    s_add_u32 s34, s34, 2359296
    v_lshrrev_b32 v8, 3, v1
    v_and_b32 v9, 7, v1
    v_mul_u32_u24 v2, 384, v8
    v_lshl_add_u32 v2, v9, 4, v2
    ''')
    wstride, gstride = (3072, 24576) if o.interleave else (24576, 3072)
    a('s_mul_i32 s3, s4, %d' % wstride)
    a('v_add_u32 v2, s3, v2')
    for g in range(8):
        a('s_mov_b32 s%d, %d' % (68 + g, g * gstride))
    a('s_mov_b32 s38, 196608\ns_mov_b32 s39, 0x20000\ns_mov_b32 s42, 196608\ns_mov_b32 s43, 0x20000')
    a('s_mov_b32 s54, %d\ns_mov_b32 s55, 0x20000' % WS_SIZE)
    a('s_mov_b32 s89, %d' % o.spin)
    a('s_waitcnt lgkmcnt(0)')
    if o.stamps:
        a('v_writelane_b32 v254, s90, 0')
    a('''
    s_add_u32 s36, s10, s34
    s_addc_u32 s37, s11, 0
    s_and_b32 s37, s37, 0xffff
    ''')
    a('''
    s_mov_b32 s52, s32
    s_and_b32 s53, s33, 0xffff
    ''')
    a('s_load_dword s81, s[32:33], 0')
    a('''
    s_mul_i32 s3, s6, 80
    s_mul_i32 s35, s4, 10
    s_add_u32 s35, s35, s3
    s_lshl_b32 s3, s35, 1
    s_add_u32 s60, s8, s3
    s_addc_u32 s61, s9, 0
    s_load_dwordx4 s[76:79], s[60:61], 0
    s_load_dword s80, s[60:61], 16
    s_load_dwordx4 s[84:87], s[60:61], 1280
    s_load_dword s88, s[60:61], 1296
    s_mul_i32 s3, s35, 12288
    s_mul_i32 s62, s5, 384
    s_add_u32 s3, s3, s62
    s_add_u32 s14, s14, s3
    s_addc_u32 s15, s15, 0
    s_mul_i32 s3, s35, 3072
    s_mul_i32 s62, s5, 96
    s_add_u32 s3, s3, s62
    s_add_u32 s20, s20, s3
    s_addc_u32 s21, s21, 0
    s_sub_u32 s20, s20, 384
    s_subb_u32 s21, s21, 0
    s_add_u32 s22, s22, s3
    s_addc_u32 s23, s23, 0
    s_sub_u32 s22, s22, 480
    s_subb_u32 s23, s23, 0
    v_mov_b32 v170, s14
    v_mov_b32 v171, s15
    v_mov_b32 v172, 0x3000
    v_mov_b32 v173, 0
    s_mov_b32 exec_lo, 0xff000000
    v_mov_b32 v170, s20
    v_mov_b32 v171, s21
    v_mov_b32 v172, 0xc00
    s_mov_b32 exec_lo, 0xc0000000
    v_mov_b32 v170, s22
    v_mov_b32 v171, s23
    s_mov_b32 exec_lo, -1
    s_mov_b32 exec_hi, 0xf
    v_lshlrev_b32 v4, 4, v1
    v_add_co_u32 v170, vcc, v170, v4
    v_addc_co_u32 v171, vcc, 0, v171, vcc
    ''')
    def wload(row):
        a.vmem('global_load_dwordx4 %s, v[170:171], off%s' % (r4(112 + row * 4), wnt), 'W%d' % row)
        if row < 9:
            a('v_lshl_add_u64 v[170:171], v[172:173], 0, v[170:171]')
    wq = list(range(10))
    def wfeed(k):
        while k > 0 and wq:
            wload(wq.pop(0))
            k -= 1
        if k > 0:
            a('s_mov_b32 exec_hi, -1')
            st.feed(k)
            a('s_mov_b32 exec_hi, 0xf')
    wfeed(o.w1)
    a('s_mov_b64 exec, -1')
    if o.prio:
        a('s_lshr_b32 s3, s4, 2')
        a('s_cmp_eq_u32 s3, 0')
        a('s_cbranch_scc1 L_prio0')
        a('s_setprio 1')
        a('s_branch L_prio1')
        a('L_prio0:')
        a('s_setprio 0')
        a('L_prio1:')
    st.feed(o.k1)
    a('''
    s_add_u32 s40, s12, s34
    s_addc_u32 s41, s13, 0
    s_and_b32 s41, s41, 0xffff
    s_mul_i32 s3, s5, 245760
    s_mul_i32 s62, s6, 160
    s_add_u32 s3, s3, s62
    s_add_u32 s44, s16, s3
    s_addc_u32 s45, s17, 0
    s_and_b32 s45, s45, 0xffff
    s_sub_u32 s46, 245760, s62
    s_mov_b32 s47, 0x20000
    s_mul_i32 s3, s5, 61440
    s_add_u32 s3, s3, s62
    s_add_u32 s48, s24, s3
    s_addc_u32 s49, s25, 0
    s_and_b32 s49, s49, 0xffff
    s_sub_u32 s50, 61440, s62
    s_mov_b32 s51, 0x20000
    s_mov_b32 s56, s28
    s_and_b32 s57, s29, 0xffff
    s_mov_b32 s58, 2560
    s_mov_b32 s59, 0x20000
    s_mov_b32 s92, 0x05040100
    s_mov_b32 s93, 0x07060302
    s_lshl_b32 s94, s5, 3
    s_add_u32 s94, s94, s6
    ''')
    a('''
    v_lshlrev_b32 v174, 5, v1
    s_mul_i32 s3, s4, 2304
    v_add_u32 v174, s3, v174
    v_add_u32 v175, 768, v174
    s_mov_b32 exec_lo, 0xff000000
    v_add_u32 v174, 768, v174
    v_add_u32 v175, 384, v175
    s_mov_b32 exec_lo, -1
    ''')
    for i in range(16):
        a('v_mov_b32 v%d, 0' % (152 + i))
    if o.stamps == 2:
        a('s_memrealtime s[100:101]')
    a('s_waitcnt lgkmcnt(0)')
    if o.stamps == 2:
        a('v_writelane_b32 v254, s100, %d' % len(stamps))
        stamps.append('Wiss')
    stamp('issued0')
    a('s_mov_b32 exec_hi, 0xf')
    for i in range(5):
        a.wait_vm('W%d' % (2 * i + 1))
        if o.stamps == 2 and i in (0, 2, 4):
            stamp('W%d' % (2 * i + 1))
        x0, x1 = 's%d' % (76 + i), 's%d' % (84 + i)
        for d in range(4):
            t0 = 168 if d % 2 == 0 else 192
            ra, rb = 112 + (2 * i) * 4 + d, 112 + (2 * i + 1) * 4 + d
            a('v_perm_b32 v%d, v%d, v%d, s92' % (t0, rb, ra))
            a('v_perm_b32 v%d, v%d, v%d, s93' % (t0 + 1, rb, ra))
            a('v_dot2c_f32_bf16 v%d, %s, v%d' % (152 + 2 * d, x0, t0))
            a('v_dot2c_f32_bf16 v%d, %s, v%d' % (160 + 2 * d, x1, t0))
            a('v_dot2c_f32_bf16 v%d, %s, v%d' % (153 + 2 * d, x0, t0 + 1))
            a('v_dot2c_f32_bf16 v%d, %s, v%d' % (161 + 2 * d, x1, t0 + 1))
        wfeed(o.kp if wq or o.w1 < 10 else o.kp)
    a('''
    ds_write_b128 v174, v[152:155] offset:%d
    ds_write_b128 v174, v[156:159] offset:%d
    ds_write_b128 v175, v[160:163] offset:%d
    ds_write_b128 v175, v[164:167] offset:%d
    s_mov_b32 exec_hi, -1
    ''' % (L_P, L_P + 16, L_P, L_P + 16))
    a('s_add_u32 s81, s81, 0x%x' % TAGSTEP)
    a('v_mov_b32 v3, s81')
    st.feed(o.kb)
    a('s_waitcnt lgkmcnt(0)\ns_barrier')
    if o.prio:
        a('s_setprio 0')
    stamp('bar1')
    a('''
    s_cmp_gt_u32 s4, 2
    s_cbranch_scc1 L_after_pub0
    s_mul_i32 s3, s4, 768
    v_lshl_add_u32 v4, v1, 2, s3
    ''')
    for n in range(0, 24, 2):
        offs = [(m // 3) * 9 + (m % 3) for m in (n, n + 1)]
        a('ds_read2st64_b32 %s, v4 offset0:%d offset1:%d' % (r2(112 + n), offs[0], offs[1]))
    a('''
    s_mul_i32 s3, s94, 3072
    s_lshl_b32 s62, s4, 10
    s_add_u32 s3, s3, s62
    s_add_u32 s3, s3, %d
    v_lshlrev_b32 v5, 4, v1
    v_mov_b32 v139, v3
    s_waitcnt lgkmcnt(0)
    ''' % WS_H0)
    for base in (0, 6, 12, 18):
        for k in range(3):
            a('v_add_f32 v%d, v%d, v%d' % (112 + base + k, 112 + base + k, 112 + base + 3 + k))
    for base in (0, 12):
        for k in range(3):
            a('v_add_f32 v%d, v%d, v%d' % (112 + base + k, 112 + base + k, 112 + base + 6 + k))
    for k in range(3):
        a('v_add_f32 v%d, v%d, v%d' % (136 + k, 112 + k, 124 + k))
    a.vmem('buffer_store_dwordx4 v[136:139], v5, s[52:55], s3 offen sc1', 'P0', False)
    a('L_after_pub0:')
    stamp('pub0')
    a('''
    v_mul_u32_u24 v10, 3072, v8
    s_lshl_b32 s3, s4, 7
    v_lshl_add_u32 v11, v9, 4, s3
    v_add_u32 v10, v10, v11
    s_mul_i32 s95, s5, 24576
    s_add_u32 s95, s95, %d
    s_lshl_b32 s3, s7, 10
    s_add_u32 s96, s95, s3
    ''' % WS_H0)
    a('''
    s_mov_b32 s60, s8
    s_and_b32 s61, s9, 0xffff
    s_mov_b32 s62, 2560
    s_mov_b32 s63, 0x20000
    s_mov_b32 s64, s26
    s_and_b32 s65, s27, 0xffff
    s_mov_b32 s66, 1280
    s_mov_b32 s67, 0x20000
    s_mul_i32 s3, s4, 160
    v_and_b32 v4, 31, v1
    v_lshl_add_u32 v5, v4, 3, s3
    v_lshrrev_b32 v6, 5, v1
    v_mul_u32_u24 v6, 1280, v6
    v_add_u32 v6, v5, v6
    v_cmp_lt_u32 vcc, 19, v4
    v_mov_b32 v7, 0x10000
    v_cndmask_b32 v5, v5, v7, vcc
    ''')
    a.vmem('buffer_load_dwordx2 v[176:177], v6, s[60:63], 0 offen' + wnt, 'GX')
    a.vmem('buffer_load_dwordx2 v[178:179], v5, s[64:67], 0 offen' + wnt, 'GW')
    st.pfeed(o.f1)
    a('''
    v_and_b32 v12, 1, v9
    v_lshlrev_b32 v12, 4, v12
    v_mov_b32 v13, 0xffff
    v_lshlrev_b32 v13, v12, v13
    v_lshrrev_b32 v12, 1, v9
    ''')
    for r in range(4):
        a('v_cmp_eq_u32 vcc, %d, v12' % r)
        a('v_cndmask_b32 v%d, 0, v13, vcc' % (4 + r))
    a('''
    v_lshrrev_b32 v12, 5, v1
    v_mul_u32_u24 v12, 768, v12
    v_bfe_u32 v13, v1, 4, 1
    v_and_b32 v14, 8, v1
    v_cmp_ne_u32 vcc, 0, v14
    v_cndmask_b32 v13, v13, 2, vcc
    v_lshl_add_u32 v12, v13, 8, v12
    v_lshl_add_u32 v12, v9, 2, v12
    s_lshl_b32 s3, s4, 5
    v_add_u32 v12, s3, v12
    ''')
    for g in range(8):
        a('v_mov_b32 v%d, 0' % (S + g))
    st.pace_until(o.gq, D)
    a.vmem('buffer_load_dwordx4 v[240:243], v10, s[52:55], s96 offen sc1', 'GQ')
    a.vmem('buffer_load_dwordx4 v[244:247], v10, s[52:55], s95 offen offset:2048 sc1', 'GF')
    a.wait_vm('GW')
    for d in range(2):
        a('''
        v_lshlrev_b32 v180, 16, v{x}
        v_and_b32 v181, 0xffff0000, v{x}
        v_lshlrev_b32 v182, 16, v{w}
        v_and_b32 v183, 0xffff0000, v{w}
        v_mul_f32 v180, v180, v182
        v_mul_f32 v181, v181, v183
        v_cvt_pk_bf16_f32 v180, v180, v181
        v_and_b32 v{o1}, 0xffff0000, v180
        v_lshlrev_b32 v{o0}, 16, v180
        '''.format(x=176 + d, w=178 + d, o0=184 + 2 * d, o1=185 + 2 * d))
    a('''
    v_lshrrev_b32 v189, 5, v1
    s_lshl_b32 s3, s4, 2
    v_lshl_add_u32 v189, v189, 5, s3
    v_add_f32 v184, v184, v185
    v_add_f32 v186, v186, v187
    v_add_f32 v184, v184, v186
    v_add_f32_dpp v184, v184, v184 row_ror:8 row_mask:0xf bank_mask:0xf
    v_add_f32_dpp v184, v184, v184 row_ror:4 row_mask:0xf bank_mask:0xf
    v_add_f32_dpp v184, v184, v184 quad_perm:[2,3,0,1] row_mask:0xf bank_mask:0xf
    v_add_f32_dpp v184, v184, v184 quad_perm:[1,0,3,2] row_mask:0xf bank_mask:0xf
    v_mov_b32 v185, v184
    v_permlane16_swap_b32 v184, v185
    v_add_f32 v184, v184, v185
    s_mov_b32 exec_lo, 1
    s_mov_b32 exec_hi, 1
    ds_write_b32 v189, v184 offset:%d
    s_mov_b64 exec, -1
    ''' % L_G)
    stamp('issued1')
    st.pace_until(o.gq + D - 2, D)
    a.wait_vm('GF')
    a('L_chk0:')
    a('''
    v_cmp_ne_u32 vcc, v243, v3
    v_cmp_ne_u32 s[98:99], v247, v3
    s_or_b64 vcc, vcc, s[98:99]
    s_cbranch_vccz L_ok0
    buffer_load_dwordx4 v[240:243], v10, s[52:55], s96 offen sc1
    buffer_load_dwordx4 v[244:247], v10, s[52:55], s95 offen offset:2048 sc1
    s_waitcnt vmcnt(0)
    ''')
    spin('L_chk0')
    a('L_ok0:')
    stamp('gath0')
    a('''
    v_permlane32_swap_b32 v240, v244
    v_permlane32_swap_b32 v241, v245
    v_permlane32_swap_b32 v242, v246
    v_add_f32 v240, v240, v244
    v_add_f32 v241, v241, v245
    v_add_f32 v242, v242, v246
    v_mov_b32 v243, v242
    v_permlane16_swap_b32 v240, v241
    v_permlane16_swap_b32 v242, v243
    v_add_f32 v240, v240, v241
    v_add_f32 v242, v242, v243
    v_add_f32_dpp v244, v240, v240 row_ror:8 row_mask:0xf bank_mask:0x3
    v_add_f32_dpp v244, v242, v242 row_ror:8 row_mask:0xf bank_mask:0xc
    ds_write_b32 v12, v244 offset:%d
    v_lshlrev_b32 v13, 5, v9
    v_min_u32 v14, 5, v8
    s_mul_i32 s3, s4, 6
    v_add_u32 v14, s3, v14
    v_bfe_u32 v15, v1, 2, 1
    v_mul_u32_u24 v11, 96, v15
    v_add_lshl_u32 v14, v14, v11, 2
    v_lshlrev_b32 v15, 5, v15
    ''' % L_QF)
    st.feed(o.f2)
    a('s_waitcnt lgkmcnt(0)\ns_barrier')
    qt = [(240, 244), (220, 224), (228, 248)]
    for t in range(3):
        a('ds_read_b128 %s, v13 offset:%d' % (r4(qt[t][0]), L_QF + t * 256))
        a('ds_read_b128 %s, v13 offset:%d' % (r4(qt[t][1]), L_QF + t * 256 + 16))
    a('ds_read_b32 v10, v14 offset:%d' % (L_QF + 768))
    a('ds_read_b32 v11, v14 offset:%d' % (L_QF + 768 + 192))
    a('ds_read_b128 v[192:195], v15 offset:%d' % L_G)
    a('ds_read_b128 v[196:199], v15 offset:%d' % (L_G + 16))
    st.pfeed(o.f3)
    a('s_waitcnt lgkmcnt(0)')
    for t in range(3):
        for d in range(4):
            src = qt[t][d // 2] + (d % 2) * 2
            a('v_cvt_pk_bf16_f32 v%d, v%d, v%d' % (Q + t * 4 + d, src, src + 1))
    stamp('bar2')
    a('''
    v_add_f32 v192, v192, v193
    v_add_f32 v194, v194, v195
    v_add_f32 v196, v196, v197
    v_add_f32 v198, v198, v199
    v_add_f32 v192, v192, v194
    v_add_f32 v196, v196, v198
    v_add_f32 v252, v192, v196
    ''')
    bf16r(252, 252)
    a('''
    v_mul_f32 v252, 0x%x, v252
    v_exp_f32 v252, v252
    v_add_f32 v252, 1.0, v252
    v_rcp_f32 v252, v252
    ''' % (LOG2E | 0x80000000))
    bf16r(252, 252)
    a('v_sub_f32 v253, 1.0, v252')
    bf16r(253, 253)
    bf16r(10, 10)
    bf16r(11, 11)
    a('''
    v_mul_f32 v12, 0x%x, v10
    v_exp_f32 v12, v12
    v_add_f32 v12, 1.0, v12
    v_rcp_f32 v12, v12
    v_mul_f32 v10, v10, v12
    ''' % (LOG2E | 0x80000000))
    bf16r(10, 10)
    a('v_mul_f32 v10, v10, v11')
    bf16r(10, 10)
    a('v_mul_f32 v10, v10, v253')
    a('v_mov_b32 v11, v252')
    st.pfeed(o.f3)
    for g0 in range(0, 8, 2):
        st.need(3 * g0 + 5, D)
        for t in range(3):
            for d in range(4):
                for gg in range(2):
                    a('v_dot2c_f32_bf16 v%d, v%d, v%d' % (S + g0 + gg, K(g0 + gg, t, d), Q + t * 4 + d))
        if g0 < 6:
            st.pfeed(o.f4)
    stamp('qk')
    for ctl in ('quad_perm:[1,0,3,2]', 'quad_perm:[2,3,0,1]', 'row_half_mirror'):
        for g in range(8):
            a('v_add_f32_dpp v%d, v%d, v%d %s row_mask:0xf bank_mask:0xf' % (S + g, S + g, S + g, ctl))
    st.pfeed(o.fa)
    for g in range(0, 8, 2):
        a('v_cvt_pk_bf16_f32 v%d, v%d, v%d' % (240 + g // 2, S + g, S + g + 1))
    for g in range(0, 8, 2):
        a('v_lshlrev_b32 v%d, 16, v%d' % (S + g, 240 + g // 2))
        a('v_and_b32 v%d, 0xffff0000, v%d' % (S + g + 1, 240 + g // 2))
    for g in range(8):
        a('v_mul_f32 v%d, 0x%x, v%d' % (S + g, SCALE, S + g))
    for g in range(0, 8, 2):
        a('v_cvt_pk_bf16_f32 v%d, v%d, v%d' % (240 + g // 2, S + g, S + g + 1))
    for g in range(0, 8, 2):
        a('v_lshlrev_b32 v%d, 16, v%d' % (S + g, 240 + g // 2))
        a('v_and_b32 v%d, 0xffff0000, v%d' % (S + g + 1, 240 + g // 2))
    a('''
    v_max3_f32 v240, v232, v233, v234
    v_max3_f32 v241, v235, v236, v237
    v_max3_f32 v240, v240, v238, v239
    v_max_f32 v240, v240, v241
    v_max_f32_dpp v240, v240, v240 row_ror:8 row_mask:0xf bank_mask:0xf
    v_mov_b32 v241, v240
    v_permlane16_swap_b32 v240, v241
    v_max_f32 v240, v240, v241
    v_mov_b32 v241, v240
    v_permlane32_swap_b32 v240, v241
    v_max_f32 v240, v240, v241
    s_lshl_b32 s3, s4, 2
    v_mov_b32 v14, s3
    v_mov_b32 v15, 0
    s_mov_b64 exec, 1
    ds_write_b32 v14, v240 offset:%d
    s_mov_b64 exec, -1
    ''' % L_MX)
    st.feed(o.oa)
    a('''
    s_waitcnt lgkmcnt(0)
    s_barrier
    ds_read_b128 v[240:243], v15 offset:%d
    ds_read_b128 v[244:247], v15 offset:%d
    s_waitcnt lgkmcnt(0)
    v_max3_f32 v240, v240, v241, v242
    v_max3_f32 v244, v243, v244, v245
    v_max3_f32 v240, v240, v246, v247
    v_max_f32 v248, v240, v244
    ''' % (L_MX, L_MX + 16))
    st.pfeed(o.fb)
    for g in range(8):
        a('v_sub_f32 v%d, v%d, v248' % (S + g, S + g))
    for g in range(8):
        a('v_mul_f32 v%d, 0x%x, v%d' % (S + g, LOG2E, S + g))
    for g in range(8):
        a('v_exp_f32 v%d, v%d' % (S + g, S + g))
    a('''
    v_add_f32 v240, v232, v233
    v_add_f32 v241, v234, v235
    v_add_f32 v242, v236, v237
    v_add_f32 v243, v238, v239
    v_add_f32 v240, v240, v241
    v_add_f32 v242, v242, v243
    v_add_f32 v240, v240, v242
    v_add_f32_dpp v240, v240, v240 row_ror:8 row_mask:0xf bank_mask:0xf
    v_mov_b32 v241, v240
    v_permlane16_swap_b32 v240, v241
    v_add_f32 v240, v240, v241
    v_mov_b32 v241, v240
    v_permlane32_swap_b32 v240, v241
    v_add_f32 v240, v240, v241
    s_mov_b64 exec, 1
    ds_write_b32 v14, v240 offset:%d
    s_mov_b64 exec, -1
    ''' % L_LS)
    for g in range(8):
        a('v_cvt_pk_bf16_f32 v%d, v%d, v%d' % (S + g, S + g, S + g))
    st.feed(o.ob)
    a('s_waitcnt lgkmcnt(0)')
    a('s_barrier')
    a('''
    s_cmp_lg_u32 s4, 0
    s_cbranch_scc1 L_noml
    ds_read_b128 v[240:243], v15 offset:%d
    ds_read_b128 v[244:247], v15 offset:%d
    s_lshl_b32 s3, s94, 4
    s_add_u32 s3, s3, %d
    v_mov_b32 v250, 0
    v_mov_b32 v251, v3
    s_waitcnt lgkmcnt(0)
    v_add_f32 v240, v240, v241
    v_add_f32 v242, v242, v243
    v_add_f32 v244, v244, v245
    v_add_f32 v246, v246, v247
    v_add_f32 v240, v240, v242
    v_add_f32 v244, v244, v246
    v_add_f32 v249, v240, v244
    s_mov_b64 exec, 1
    ''' % (L_LS, L_LS + 16, WS_ML))
    a.vmem('buffer_store_dwordx4 v[248:251], off, s[52:55], s3 sc1', 'ML', False)
    a('s_mov_b64 exec, -1')
    a('L_noml:')
    st.pfeed(o.fc)
    a('''
    v_lshlrev_b32 v12, 3, v8
    s_lshr_b32 s3, s4, 2
    s_lshl_b32 s3, s3, 1
    s_and_b32 s62, s4, 1
    s_add_u32 s3, s3, s62
    s_and_b32 s62, s4, 2
    s_lshl_b32 s62, s62, 1
    s_add_u32 s3, s3, s62
    v_add_u32 v12, s3, v12
    v_mul_u32_u24 v12, 1280, v12
    v_lshl_add_u32 v109, v9, 2, v12
    v_lshl_add_u32 v108, v9, 4, v12
    s_mov_b32 s97, 81920
    s_mov_b32 s100, 163840
    s_mul_i32 s3, s4, 6
    v_add_u32 v12, s3, v8
    v_mul_u32_u24 v12, 1280, v12
    v_cmp_lt_u32 vcc, 5, v8
    v_cndmask_b32 v12, v12, 2.0, vcc
    v_lshl_add_u32 v111, v9, 2, v12
    v_lshl_add_u32 v110, v9, 4, v12
    ''')
    for g in range(8):
        for r in range(4):
            a('v_and_b32 v%d, v%d, v%d' % (16 + g * 4 + r, S + g, 4 + r))
    st.pfeed(o.fd)
    a('''
    v_lshlrev_b32 v4, 4, v1
    s_lshl_b32 s3, s4, 10
    v_add_u32 v5, s3, v4
    v_lshlrev_b32 v6, 4, v9
    v_lshlrev_b32 v7, 10, v9
    v_lshl_add_u32 v7, v8, 4, v7
    s_lshl_b32 s3, s4, 7
    v_add_u32 v7, s3, v7
    s_lshl_b32 s95, s5, 7
    s_add_u32 s95, s95, %d
    s_lshl_b32 s96, s5, 13
    s_add_u32 s96, s96, %d
    s_lshl_b32 s62, s94, 10
    s_add_u32 s62, s62, %d
    ''' % (WS_ML, WS_H1, WS_H1))
    st.pfeed(o.fd)
    for i in range(20):
        a('v_mov_b32 v%d, 0' % (88 + i))
    stamp('soft')
    def split_weights():
        a.wait_vm('GML')
        a('L_chkml:')
        a('''
        v_cmp_ne_u32 vcc, v251, v3
        s_cbranch_vccz L_okml
        buffer_load_dwordx4 v[248:251], v6, s[52:55], s95 offen sc1
        s_waitcnt vmcnt(0)
        ''')
        spin('L_chkml')
        a('L_okml:')
        a('''
        v_max_f32_dpp v12, v248, v248 quad_perm:[1,0,3,2] row_mask:0xf bank_mask:0xf
        v_max_f32_dpp v12, v12, v12 quad_perm:[2,3,0,1] row_mask:0xf bank_mask:0xf
        v_sub_f32 v12, v248, v12
        v_mul_f32 v12, 0x%x, v12
        v_exp_f32 v12, v12
        v_mul_f32 v13, v12, v249
        v_add_f32_dpp v13, v13, v13 quad_perm:[1,0,3,2] row_mask:0xf bank_mask:0xf
        v_add_f32_dpp v13, v13, v13 quad_perm:[2,3,0,1] row_mask:0xf bank_mask:0xf
        v_rcp_f32 v13, v13
        v_mul_f32 v12, v12, v11
        v_mul_f32 v12, v12, v13
        ''' % LOG2E)
    gml = max(o.gml, st.n - 24)
    late_ml = gml >= 21
    st.hooks[24 + gml] = lambda: a.vmem('buffer_load_dwordx4 v[248:251], v6, s[52:55], s95 offen sc1', 'GML')
    done_ml = False
    for g in range(8):
        st.need(24 + 3 * g + 2, D)
        if g == 7:
            st.feed(8)
        for t in range(3):
            c = '0' if g == 0 else r4(O + 4 * t)
            a('v_mfma_f32_16x16x32_bf16 %s, %s, %s, %s' % (r4(O + 4 * t), r4(16 + 4 * g), r4(V(g, t)), c))
        if not done_ml and 3 * g + 2 > gml and not late_ml:
            split_weights()
            done_ml = True
    assert done_ml or late_ml
    stamp('pv')
    for t in range(3):
        a('v_permlane32_swap_b32 v%d, v%d' % (O + 4 * t, O + 4 * t + 2))
        a('v_permlane32_swap_b32 v%d, v%d' % (O + 4 * t + 1, O + 4 * t + 3))
    for t in range(3):
        a('v_add_f32_dpp v%d, v%d, v%d row_ror:8 row_mask:0xf bank_mask:0x3' % (240 + t, O + 4 * t + 2, O + 4 * t))
    for t in range(3):
        a('v_add_f32_dpp v%d, v%d, v%d row_ror:8 row_mask:0xf bank_mask:0xc' % (240 + t, O + 4 * t + 1, O + 4 * t + 3))
    a('''
    ds_write_b128 v5, v[240:243] offset:%d
    s_waitcnt lgkmcnt(0)
    s_barrier
    s_cmp_lg_u32 s4, 0
    s_cbranch_scc1 L_nopub1
    ''' % L_OP)
    for w in range(8):
        a('ds_read_b128 %s, v4 offset:%d' % (r4(112 + 4 * w), L_OP + w * 1024))
    a('v_mov_b32 v147, v3')
    a('s_waitcnt lgkmcnt(0)')
    for base in (0, 8, 16, 24):
        for k in range(3):
            a('v_add_f32 v%d, v%d, v%d' % (112 + base + k, 112 + base + k, 116 + base + k))
    for base in (0, 16):
        for k in range(3):
            a('v_add_f32 v%d, v%d, v%d' % (112 + base + k, 112 + base + k, 120 + base + k))
    for k in range(3):
        a('v_add_f32 v%d, v%d, v%d' % (144 + k, 112 + k, 128 + k))
    a.vmem('buffer_store_dwordx4 v[144:147], v4, s[52:55], s62 offen sc1', 'P1', False)
    a('L_nopub1:')
    a.vmem('buffer_load_dwordx4 v[244:247], v7, s[52:55], s96 offen sc1', 'GO')
    stamp('pub1')
    if late_ml:
        split_weights()
    a.wait_vm('WO7')
    for pr in range(2):
        for d in range(5):
            ra = (48 + 8 * pr + d) if d < 4 else 64 + 2 * pr
            rb = (52 + 8 * pr + d) if d < 4 else 65 + 2 * pr
            a('v_perm_b32 v%d, v%d, v%d, s92' % (68 + 10 * pr + 2 * d, rb, ra))
            a('v_perm_b32 v%d, v%d, v%d, s93' % (69 + 10 * pr + 2 * d, rb, ra))
    a('s_waitcnt vmcnt(0)')
    a('L_chk1:')
    a('''
    v_cmp_ne_u32 vcc, v247, v3
    s_cbranch_vccz L_ok1
    buffer_load_dwordx4 v[244:247], v7, s[52:55], s96 offen sc1
    s_waitcnt vmcnt(0)
    ''')
    spin('L_chk1')
    a('L_ok1:')
    stamp('gath1')
    for t in range(3):
        a('v_mul_f32 v%d, v%d, v12' % (244 + t, 244 + t))
    for ctl in ('quad_perm:[1,0,3,2]', 'quad_perm:[2,3,0,1]'):
        for t in range(3):
            a('v_add_f32_dpp v%d, v%d, v%d %s row_mask:0xf bank_mask:0xf' % (244 + t, 244 + t, 244 + t, ctl))
    a('''
    v_cvt_pk_bf16_f32 v240, v244, v245
    v_cvt_pk_bf16_f32 v241, v246, v10
    v_mov_b32_dpp v242, v240 row_half_mirror row_mask:0xf bank_mask:0xf
    v_mov_b32_dpp v243, v241 row_half_mirror row_mask:0xf bank_mask:0xf
    ''')
    for n in range(10):
        a('v_dot2c_f32_bf16 v%d, v%d, v240' % (88 + n, 68 + n))
    for n in range(10):
        a('v_dot2c_f32_bf16 v%d, v%d, v242' % (98 + n, 68 + n))
    for n in range(10):
        a('v_dot2c_f32_bf16 v%d, v%d, v241' % (88 + n, 78 + n))
    for n in range(10):
        a('v_dot2c_f32_bf16 v%d, v%d, v243' % (98 + n, 78 + n))
    for n in range(10):
        a('v_permlane32_swap_b32 v%d, v%d' % (88 + n, 98 + n))
    for n in range(10):
        a('v_add_f32 v%d, v%d, v%d' % (88 + n, 88 + n, 98 + n))
    for n in range(5):
        a('v_permlane16_swap_b32 v%d, v%d' % (88 + n, 93 + n))
    for n in range(5):
        a('v_add_f32 v%d, v%d, v%d' % (88 + n, 88 + n, 93 + n))
    a('''
    v_add_f32_dpp v240, v88, v88 row_ror:8 row_mask:0xf bank_mask:0x3
    v_add_f32_dpp v241, v90, v90 row_ror:8 row_mask:0xf bank_mask:0x3
    v_add_f32_dpp v242, v92, v92 row_ror:8 row_mask:0xf bank_mask:0xf
    v_add_f32_dpp v240, v89, v89 row_ror:8 row_mask:0xf bank_mask:0xc
    v_add_f32_dpp v241, v91, v91 row_ror:8 row_mask:0xf bank_mask:0xc
    ds_write_b128 v5, v[240:243] offset:%d
    s_waitcnt lgkmcnt(0)
    s_barrier
    s_cmp_lg_u32 s4, 0
    s_cbranch_scc1 L_wave_done
    ''' % L_YP)
    for w in range(8):
        a('ds_read_b128 %s, v4 offset:%d' % (r4(112 + 4 * w), L_YP + w * 1024))
    a('''
    v_mov_b32 v147, v3
    s_lshl_b32 s3, s6, 15
    s_add_u32 s96, s3, %d
    s_lshl_b32 s3, s5, 10
    s_add_u32 s62, s96, s3
    v_lshrrev_b32 v6, 1, v1
    v_lshlrev_b32 v6, 10, v6
    v_and_b32 v7, 1, v1
    v_lshl_add_u32 v6, v7, 4, v6
    s_lshl_b32 s3, s5, 5
    v_add_u32 v6, s3, v6
    s_waitcnt lgkmcnt(0)
    ''' % WS_H2)
    for base in (0, 8, 16, 24):
        for k in range(3):
            a('v_add_f32 v%d, v%d, v%d' % (112 + base + k, 112 + base + k, 116 + base + k))
    for base in (0, 16):
        for k in range(3):
            a('v_add_f32 v%d, v%d, v%d' % (112 + base + k, 112 + base + k, 120 + base + k))
    for k in range(3):
        a('v_add_f32 v%d, v%d, v%d' % (144 + k, 112 + k, 128 + k))
    a.vmem('buffer_store_dwordx4 v[144:147], v4, s[52:55], s62 offen sc1', 'P2', False)
    a.vmem('buffer_load_dwordx4 v[244:247], v6, s[52:55], s96 offen sc1', 'GY', False)
    stamp('pub2')
    a('''
    s_lshr_b32 s76, s5, 3
    s_and_b32 s76, s76, 1
    s_mul_i32 s76, s76, 5
    s_lshr_b32 s77, s5, 2
    s_and_b32 s77, s77, 1
    s_lshr_b32 s78, s5, 4
    s_lshr_b32 s79, s5, 1
    s_xor_b32 s78, s78, s79
    s_and_b32 s78, s78, 1
    s_mul_i32 s78, s78, 640
    s_mul_i32 s79, s6, 80
    s_add_u32 s78, s78, s79
    s_and_b32 s79, s5, 3
    s_lshl_b32 s79, s79, 1
    s_add_u32 s80, s76, s77
    s_add_u32 s81, s76, 4
    v_add_u32 v8, s79, v7
    v_lshrrev_b32 v9, 5, v1
    v_lshlrev_b32 v9, 1, v9
    v_add_u32 v9, s80, v9
    v_mov_b32 v13, s81
    v_and_b32 v12, 16, v1
    v_cmp_ne_u32 vcc, 0, v12
    v_cndmask_b32 v9, v9, v13, vcc
    v_lshl_add_u32 v12, v8, 3, v9
    v_lshl_add_u32 v13, v8, 1, v9
    v_add_u32 v13, 56, v13
    v_cmp_lt_u32 vcc, 7, v9
    v_cndmask_b32 v12, v12, v13, vcc
    v_add_lshl_u32 v12, s78, v12, 1
    s_mov_b32 s84, 3
    s_cmp_eq_u32 s77, 0
    s_cselect_b32 s85, 0x30003, s84
    s_waitcnt vmcnt(0)
    ''')
    a('L_chk2:')
    a('''
    v_cmp_ne_u32 vcc, v247, v3
    s_cbranch_vccz L_ok2
    buffer_load_dwordx4 v[244:247], v6, s[52:55], s96 offen sc1
    s_waitcnt vmcnt(0)
    ''')
    spin('L_chk2')
    a('L_ok2:')
    stamp('gath2')
    a('''
    v_mov_b32 v247, v246
    v_permlane32_swap_b32 v244, v245
    v_permlane32_swap_b32 v246, v247
    v_add_f32 v244, v244, v245
    v_add_f32 v246, v246, v247
    v_permlane16_swap_b32 v244, v246
    v_add_f32 v244, v244, v246
    v_add_f32_dpp v244, v244, v244 row_ror:8 row_mask:0xf bank_mask:0xf
    v_add_f32_dpp v244, v244, v244 row_ror:4 row_mask:0xf bank_mask:0xf
    v_add_f32_dpp v244, v244, v244 quad_perm:[2,3,0,1] row_mask:0xf bank_mask:0xf
    v_cvt_pk_bf16_f32 v244, v244, v244
    s_mov_b32 exec_lo, s85
    s_mov_b32 exec_hi, 3
    buffer_store_short v244, v12, s[56:59], 0 offen
    s_cmp_lg_u32 s2, 0
    s_cbranch_scc1 L_wave_done
    s_mov_b64 exec, 1
    buffer_store_dword v3, off, s[52:55], 0 sc1
    ''')
    a('L_wave_done:')
    if o.stamps:
        a('s_mov_b64 exec, -1')
        a('s_waitcnt vmcnt(0)')
        stamp('end')
        a('''
        s_lshl_b32 s3, s2, 3
        s_add_u32 s3, s3, s4
        s_lshl_b32 s3, s3, 7
        s_add_u32 s3, s3, %d
        s_getreg_b32 s62, hwreg(HW_REG_XCC_ID)
        v_writelane_b32 v254, s62, 31
        v_lshlrev_b32 v4, 2, v1
        s_mov_b32 exec_lo, -1
        s_mov_b32 exec_hi, 0
        buffer_store_dword v254, v4, s[52:55], s3 offen
        ''' % WS_ST)
    a('L_end:')
    a('s_endpgm')

    body = a.text()
    src = wrap(body, L_END)
    return src, stamps, a.pads


def parser():
    p = argparse.ArgumentParser()
    p.add_argument('-o', default='cdna_kernels/%s.s' % NAME)
    p.add_argument('--nt', type=int, default=1)
    p.add_argument('--wnt', type=int, default=1)
    for k, d in dict(w1=5, k1=0, kp=2, kb=0, depth=5, gq=23, f1=1, f2=2, f3=1, f4=1, fa=1, fb=1, fc=1, fd=1, oa=1, ob=0, gml=23, pf=2, prio=0).items():
        p.add_argument('--' + k, type=int, default=d)
    p.add_argument('--interleave', type=int, default=0)
    p.add_argument('--stamps', type=int, default=0)
    p.add_argument('--spin', type=int, default=200000)
    return p


if __name__ == '__main__':
    o = parser().parse_args()
    src, stamps, pads = build(o)
    open(o.o, 'w').write(src)
    if o.stamps:
        open(o.o + '.stamps', 'w').write(' '.join(stamps))
    print('wrote', o.o, len(src), 'bytes; pads', pads, stamps)
```

```python
import argparse
from asmlib import Asm
from gen import *

def build(o):
    a = Asm()
    nt = ' nt' if o.nt else ''
    stamps = []
    wont = ('', ' nt', ' sc1', ' sc0 sc1', ' sc0 sc1 nt', ' sc1 nt')[o.wont]
    def stamp(name):
        k = len(stamps); stamps.append(name)
        a('s_memrealtime s[90:91]')
        a('s_waitcnt lgkmcnt(0)')
        a('v_writelane_b32 v254, s90, %d' % k)
    cnt = [0]
    def pace():
        if o.depth and cnt[0] >= o.depth:
            a('s_waitcnt vmcnt(%d)' % (o.depth - 1))
        cnt[0] += 1
        for i in range(o.fill):
            a('v_add3_u32 v%d, v5, v6, v7' % (240 + i % 8))
    def kload(n):
        g, t = divmod(n, 3)
        pace()
        a('buffer_load_dwordx4 %s, v2, s[36:39], %s offen offset:%d%s' % (r4(K(g, t)), 's%d' % (68 + g), t * 128, nt))
    def vload(n):
        g, t = divmod(n, 3)
        pace()
        a('buffer_load_dwordx4 %s, v2, s[40:43], %s offen offset:%d%s' % (r4(V(g, t)), 's%d' % (68 + g), t * 128, nt))
    a('s_cmp_ge_u32 s2, 256')
    a('s_cbranch_scc1 L_end')
    a('s_load_dwordx16 s[8:23], s[0:1], 0')
    if o.pf:
        a('s_getpc_b64 s[60:61]')
        a('L_pc:')
        a('s_lshr_b32 s3, s2, 3')
        a('s_and_b32 s3, s3, 3')
        a('s_lshl_b32 s3, s3, 12')
        a('v_lshl_add_u32 v4, v0, 6, s3')
        a('v_min_u32 v4, L_end-L_pc, v4')
        a('v_cmp_gt_u32 vcc, 64, v0')
        a('s_and_saveexec_b64 s[98:99], vcc')
        a('s_cbranch_execz L_nopf')
        a('global_load_dword v250, v4, s[60:61]')
        a('L_nopf:')
        a('s_mov_b64 exec, -1')
    a('s_load_dwordx8 s[24:31], s[0:1], 64')
    a('s_load_dwordx2 s[32:33], s[0:1], 96')
    a('s_memrealtime s[90:91]')
    a('v_mov_b32 v254, 0')
    stamps.append('entry')
    a('''
    v_lshrrev_b32 v4, 6, v0
    v_and_b32 v1, 63, v0
    v_readfirstlane_b32 s4, v4
    s_and_b32 s3, s2, 7
    s_lshl_b32 s3, s3, 2
    s_lshr_b32 s5, s2, 6
    s_add_u32 s5, s5, s3
    s_lshr_b32 s6, s2, 3
    s_and_b32 s6, s6, 7
    s_lshr_b32 s7, s6, 2
    s_and_b32 s3, s6, 3
    s_lshl_b32 s34, s7, 5
    s_add_u32 s34, s34, s5
    s_mul_i32 s34, s34, 3145728
    s_mul_i32 s3, s3, 196608
    s_add_u32 s34, s34, s3
    s_add_u32 s34, s34, 2359296
    v_lshrrev_b32 v8, 3, v1
    v_and_b32 v9, 7, v1
    ''')
    if o.linear:
        a('v_lshlrev_b32 v2, 4, v1')
    else:
        a('v_mul_u32_u24 v2, 384, v8\nv_lshl_add_u32 v2, v9, 4, v2')
    wstride, gstride = (3072, 24576) if o.interleave else (24576, 3072)
    a('s_mul_i32 s3, s4, %d' % wstride)
    a('v_add_u32 v2, s3, v2')
    for g in range(8):
        a('s_mov_b32 s%d, %d' % (68 + g, g * gstride))
    a('s_mov_b32 s38, 196608\ns_mov_b32 s39, 0x20000\ns_mov_b32 s42, 196608\ns_mov_b32 s43, 0x20000')
    a('s_mov_b32 s54, %d\ns_mov_b32 s55, 0x20000' % WS_SIZE)
    a('s_waitcnt lgkmcnt(0)')
    a('v_writelane_b32 v254, s90, 0')
    a('''
    s_add_u32 s36, s10, s34
    s_addc_u32 s37, s11, 0
    s_and_b32 s37, s37, 0xffff
    s_add_u32 s40, s12, s34
    s_addc_u32 s41, s13, 0
    s_and_b32 s41, s41, 0xffff
    s_mov_b32 s52, s32
    s_and_b32 s53, s33, 0xffff
    ''')
    if o.linear:
        def kload(n):
            pace()
            a('s_mov_b32 s3, %d' % (n // 4 * 4096))
            a('buffer_load_dwordx4 v[%d:%d], v2, s[36:39], s3 offen offset:%d%s' % (16 + 4 * n, 19 + 4 * n, (n % 4) * 1024, nt))
        def vload(n):
            pace()
            a('s_mov_b32 s3, %d' % (n // 4 * 4096))
            a('buffer_load_dwordx4 v[%d:%d], v2, s[40:43], s3 offen offset:%d%s' % (112 + 4 * n, 115 + 4 * n, (n % 4) * 1024, nt))
    stamp('ready')
    def wloads():
        a('''
        s_mul_i32 s3, s6, 80
        s_mul_i32 s35, s4, 10
        s_add_u32 s35, s35, s3
        s_mul_i32 s3, s35, 12288
        s_mul_i32 s62, s5, 384
        s_add_u32 s3, s3, s62
        s_add_u32 s14, s14, s3
        s_addc_u32 s15, s15, 0
        s_mul_i32 s3, s35, 3072
        s_mul_i32 s62, s5, 96
        s_add_u32 s3, s3, s62
        s_add_u32 s20, s20, s3
        s_addc_u32 s21, s21, 0
        s_sub_u32 s20, s20, 384
        s_subb_u32 s21, s21, 0
        s_add_u32 s22, s22, s3
        s_addc_u32 s23, s23, 0
        s_sub_u32 s22, s22, 480
        s_subb_u32 s23, s23, 0
        v_mov_b32 v210, s14
        v_mov_b32 v211, s15
        v_mov_b32 v212, 0x3000
        v_mov_b32 v213, 0
        s_mov_b32 exec_lo, 0xff000000
        v_mov_b32 v210, s20
        v_mov_b32 v211, s21
        v_mov_b32 v212, 0xc00
        s_mov_b32 exec_lo, 0xc0000000
        v_mov_b32 v210, s22
        v_mov_b32 v211, s23
        s_mov_b32 exec_lo, -1
        s_mov_b32 exec_hi, 0xf
        v_lshlrev_b32 v4, 4, v1
        v_add_co_u32 v210, vcc, v210, v4
        v_addc_co_u32 v211, vcc, 0, v211, vcc
        ''')
        for row in range(10):
            pace()
            a('global_load_dwordx4 %s, v[210:211], off%s' % (r4(214 + row * 4), ('', ' nt', ' sc1', ' sc0 sc1', ' sc0 sc1 nt', ' sc1 nt')[o.wnt]))
            if row < 9:
                a('v_lshl_add_u64 v[210:211], v[212:213], 0, v[210:211]')
        a('s_mov_b64 exec, -1')
    def wo_loads():
        a('''
        s_mul_i32 s3, s5, 245760
        s_mul_i32 s62, s6, 160
        s_add_u32 s3, s3, s62
        s_add_u32 s44, s16, s3
        s_addc_u32 s45, s17, 0
        s_and_b32 s45, s45, 0xffff
        s_sub_u32 s46, 245760, s62
        s_mov_b32 s47, 0x20000
        s_mul_i32 s3, s5, 61440
        s_add_u32 s3, s3, s62
        s_add_u32 s48, s24, s3
        s_addc_u32 s49, s25, 0
        s_and_b32 s49, s49, 0xffff
        s_sub_u32 s50, 61440, s62
        s_mov_b32 s51, 0x20000
        v_lshlrev_b32 v12, 3, v8
        v_add_u32 v12, s4, v12
        v_mul_u32_u24 v12, 1280, v12
        v_lshl_add_u32 v13, v9, 2, v12
        v_lshl_add_u32 v12, v9, 4, v12
        s_mov_b32 s97, 81920
        s_mov_b32 s100, 163840
        ''')
        for t, so in enumerate(('0', 's97', 's100')):
            pace()
            a('buffer_load_dwordx4 %s, v12, s[44:47], %s offen%s' % (r4(214 + 4 * t), so, wont))
            pace()
            a('buffer_load_dword v%d, v13, s[44:47], %s offen offset:128%s' % (230 + t, so, wont))
        a('''
        s_mul_i32 s3, s4, 6
        v_add_u32 v12, s3, v8
        v_mul_u32_u24 v12, 1280, v12
        v_cmp_lt_u32 vcc, 5, v8
        v_cndmask_b32 v12, v12, 2.0, vcc
        v_lshl_add_u32 v13, v9, 2, v12
        v_lshl_add_u32 v12, v9, 4, v12
        ''')
        pace()
        a('buffer_load_dwordx4 v[226:229], v12, s[48:51], 0 offen' + wont)
        pace()
        a('buffer_load_dword v233, v13, s[48:51], 0 offen offset:128' + wont)
    if o.w:
        wloads()
    if o.prio:
        a('s_setprio 2')
    stamp('iW')
    for n in range(24):
        kload(n)
        if n == 0 and o.first:
            a('s_waitcnt vmcnt(0)')
            stamp('first')
    if o.prio:
        a('s_setprio 1')
    stamp('iK')
    if o.wo:
        wo_loads()
    if o.prio:
        a('s_setprio 0')
    for n in range(24):
        vload(n)
    stamp('iV')
    a('s_waitcnt vmcnt(12)')
    stamp('V12')
    a('s_waitcnt vmcnt(0)')
    stamp('end')
    a('''
    s_lshl_b32 s3, s2, 3
    s_add_u32 s3, s3, s4
    s_lshl_b32 s3, s3, 7
    s_add_u32 s3, s3, %d
    s_getreg_b32 s62, hwreg(HW_REG_XCC_ID)
    v_writelane_b32 v254, s62, 31
    v_lshlrev_b32 v4, 2, v1
    s_mov_b32 exec_lo, -1
    s_mov_b32 exec_hi, 0
    buffer_store_dword v254, v4, s[52:55], s3 offen
    ''' % WS_ST)
    a('L_end:')
    a('s_endpgm')
    return wrap(a.text(), 36864), stamps

if __name__ == '__main__':
    p = argparse.ArgumentParser()
    p.add_argument('-o')
    for k, d in dict(nt=1, wnt=1, depth=0, interleave=0, linear=0, w=1, wo=1, wont=1, prio=0, first=0, fill=0, pf=0).items():
        p.add_argument('--' + k, type=int, default=d)
    o = p.parse_args()
    src, stamps = build(o)
    open(o.o, 'w').write(src)
    open(o.o + '.stamps', 'w').write(' '.join(stamps))
```

```python
import struct, sys, argparse
from asmlib import Asm

NAME = 'gated_mix__sliding_block_cached__swiglu_ffn__decode'

def f2u(x):
    return struct.unpack('<I', struct.pack('<f', x))[0]

LOG2E = f2u(1.4426950408889634)
SCALE = f2u(192 ** -0.5)
TAGSTEP = 0x9E3779B9

WS_H0 = 0x10000
WS_ML = 0xD0000
WS_H1 = 0xE0000
WS_H2 = 0x120000
WS_ST = 0x180000
WS_SIZE = 0x200000
L_P, L_QF, L_G, L_MX, L_LS, L_OP, L_YP, L_END = 0, 18432, 19968, 20032, 20064, 20480, 28672, 36864

HEADER = """; Kernarg layout for this problem (104 bytes, ptrs only, base s[0:1]):
"""

def K(g, t, d=0): return 16 + g * 12 + t * 4 + d
def V(g, t, d=0): return 112 + g * 12 + t * 4 + d
def r4(n): return 'v[%d:%d]' % (n, n + 3)
def r2(n): return 'v[%d:%d]' % (n, n + 1)
Q, O, S = 208, 220, 232


def wrap(body, lds, block=512, vgpr=256, acc=256):
    src = HEADER + '; @launch grid=(256,1,1) block=(%d,1,1) lds=%d\n' % (block, lds)
    src += '''.amdgcn_target "amdgcn-amd-amdhsa--gfx950"
.text
.globl {n}_kernel
.p2align 8
.type {n}_kernel,@function
{n}_kernel:
{body}.section .rodata,"a"
.p2align 6
.amdhsa_kernel {n}_kernel
  .amdhsa_next_free_vgpr {vg}
  .amdhsa_next_free_sgpr 102
  .amdhsa_accum_offset {ac}
  .amdhsa_group_segment_fixed_size 0
  .amdhsa_kernarg_size 104
  .amdhsa_user_sgpr_count 2
  .amdhsa_user_sgpr_kernarg_segment_ptr 1
  .amdhsa_system_sgpr_workgroup_id_x 1
  .amdhsa_float_denorm_mode_32 3
.end_amdhsa_kernel
'''.format(n=NAME, body=body, vg=vgpr, ac=acc)
    return src


def build(o):
    a = Asm()
    nt = ' nt' if o.nt else ''
    wnt = ' nt' if o.wnt else ''
    stamps = []

    def stamp(name):
        if not o.stamps:
            return
        k = len(stamps)
        stamps.append(name)
        a('s_memrealtime s[90:91]')
        a('s_waitcnt lgkmcnt(0)')
        a('v_writelane_b32 v254, s90, %d' % k)

    def kload(n):
        g, t = divmod(n, 3)
        a.vmem('buffer_load_dwordx4 %s, v2, s[36:39], %s offen offset:%d%s' % (r4(K(g, t)), 's%d' % (68 + g), t * 128, nt), 'K%d' % n)

    def vload(n):
        g, t = divmod(n, 3)
        a.vmem('buffer_load_dwordx4 %s, v2, s[40:43], %s offen offset:%d%s' % (r4(V(g, t)), 's%d' % (68 + g), t * 128, nt), 'V%d' % n)

    class Stream:
        def __init__(self):
            self.items = []
            self.n = 0
            self.hooks = {}
        def feed(self, k=1):
            for _ in range(k):
                if self.n < len(self.items):
                    self.items[self.n][1]()
                    if self.n in self.hooks:
                        self.hooks[self.n]()
                    self.n += 1
        def landed(self, i):
            if i >= 0:
                a.wait_vm(self.items[i][0])
        def pace_until(self, last, depth):
            while self.n <= min(last, len(self.items) - 1):
                self.landed(self.n - depth)
                self.feed()
        def pfeed(self, k=1):
            self.pace_until(self.n + k - 1, D)
        def need(self, i, depth):
            self.pace_until(i + depth - 1, depth)
            self.landed(i)
            self.feed(1 if self.n == i + depth else 0)
    st = Stream()

    def wo_load(n):
        t = n // 2
        if t < 3:
            so = ('0', 's97', 's100')[t]
            if n % 2 == 0:
                a.vmem('buffer_load_dwordx4 %s, v108, s[44:47], %s offen%s' % (r4(48 + 4 * t), so, wnt), 'WO%d' % n)
            else:
                a.vmem('buffer_load_dword v%d, v109, s[44:47], %s offen offset:128%s' % (64 + t, so, wnt), 'WO%d' % n)
        elif n == 6:
            a.vmem('buffer_load_dwordx4 v[60:63], v110, s[48:51], 0 offen%s' % wnt, 'WO6')
        else:
            a.vmem('buffer_load_dword v67, v111, s[48:51], 0 offen offset:128%s' % wnt, 'WO7')
    for n in range(24):
        st.items.append(('K%d' % n, (lambda n=n: kload(n))))
    for n in range(24):
        st.items.append(('V%d' % n, (lambda n=n: vload(n))))
    for n in range(8):
        st.items.append(('WO%d' % n, (lambda n=n: wo_load(n))))
    D = o.depth

    def spin(label):
        a('s_sub_u32 s89, s89, 1')
        a('s_cbranch_scc1 L_end')
        a('s_branch %s' % label)

    def bf16r(dst, src):
        a('v_cvt_pk_bf16_f32 v%d, v%d, v%d' % (dst, src, src))
        a('v_and_b32 v%d, 0xffff0000, v%d' % (dst, dst))

    a('s_cmp_ge_u32 s2, 256')
    a('s_cbranch_scc1 L_end')
    a('s_load_dwordx16 s[8:23], s[0:1], 0')
    if o.prio:
        a('s_setprio 3')
    if o.pf == 2:
        a('s_getpc_b64 s[60:61]')
        a('L_pc:')
        a('s_lshr_b32 s3, s2, 3')
        a('s_and_b32 s3, s3, 3')
        a('s_lshl_b32 s3, s3, 12')
        a('v_lshl_add_u32 v4, v0, 6, s3')
        a('v_min_u32 v4, L_end-L_pc, v4')
        a('v_cmp_gt_u32 vcc, 64, v0')
        a('s_and_saveexec_b64 s[98:99], vcc')
        a('s_cbranch_execz L_nopf')
        a.vmem('global_load_dword v200, v4, s[60:61]', 'PF', False)
        a('L_nopf:')
        a('s_mov_b64 exec, -1')
    if o.pf == 1:
        a('s_getpc_b64 s[60:61]')
        a('L_pc:')
        a('v_lshlrev_b32 v4, 6, v0')
        a('v_min_u32 v4, L_end-L_pc, v4')
        a.vmem('global_load_dword v200, v4, s[60:61]', 'PF')
    a('s_load_dwordx8 s[24:31], s[0:1], 64')
    a('s_load_dwordx2 s[32:33], s[0:1], 96')
    if o.stamps:
        a('s_memrealtime s[90:91]')
        a('v_mov_b32 v254, 0')
        stamps.append('entry')
    a('''
    v_lshrrev_b32 v4, 6, v0
    v_and_b32 v1, 63, v0
    v_readfirstlane_b32 s4, v4
    s_and_b32 s3, s2, 7
    s_lshl_b32 s3, s3, 2
    s_lshr_b32 s5, s2, 6
    s_add_u32 s5, s5, s3
    s_lshr_b32 s6, s2, 3
    s_and_b32 s6, s6, 7
    s_lshr_b32 s7, s6, 2
    s_and_b32 s3, s6, 3
    s_lshl_b32 s34, s7, 5
    s_add_u32 s34, s34, s5
    s_mul_i32 s34, s34, 3145728
    s_mul_i32 s3, s3, 196608
    s_add_u32 s34, s34, s3
    s_add_u32 s34, s34, 2359296
    v_lshrrev_b32 v8, 3, v1
    v_and_b32 v9, 7, v1
    v_mul_u32_u24 v2, 384, v8
    v_lshl_add_u32 v2, v9, 4, v2
    ''')
    wstride, gstride = (3072, 24576) if o.interleave else (24576, 3072)
    a('s_mul_i32 s3, s4, %d' % wstride)
    a('v_add_u32 v2, s3, v2')
    for g in range(8):
        a('s_mov_b32 s%d, %d' % (68 + g, g * gstride))
    a('s_mov_b32 s38, 196608\ns_mov_b32 s39, 0x20000\ns_mov_b32 s42, 196608\ns_mov_b32 s43, 0x20000')
    a('s_mov_b32 s54, %d\ns_mov_b32 s55, 0x20000' % WS_SIZE)
    a('s_mov_b32 s89, %d' % o.spin)
    a('s_waitcnt lgkmcnt(0)')
    if o.stamps:
        a('v_writelane_b32 v254, s90, 0')
    a('''
    s_add_u32 s36, s10, s34
    s_addc_u32 s37, s11, 0
    s_and_b32 s37, s37, 0xffff
    ''')
    a('''
    s_mov_b32 s52, s32
    s_and_b32 s53, s33, 0xffff
    ''')
    a('s_load_dword s81, s[32:33], 0')
    a('''
    s_mul_i32 s3, s6, 80
    s_mul_i32 s35, s4, 10
    s_add_u32 s35, s35, s3
    s_lshl_b32 s3, s35, 1
    s_add_u32 s60, s8, s3
    s_addc_u32 s61, s9, 0
    s_load_dwordx4 s[76:79], s[60:61], 0
    s_load_dword s80, s[60:61], 16
    s_load_dwordx4 s[84:87], s[60:61], 1280
    s_load_dword s88, s[60:61], 1296
    s_mul_i32 s3, s35, 12288
    s_mul_i32 s62, s5, 384
    s_add_u32 s3, s3, s62
    s_add_u32 s14, s14, s3
    s_addc_u32 s15, s15, 0
    s_mul_i32 s3, s35, 3072
    s_mul_i32 s62, s5, 96
    s_add_u32 s3, s3, s62
    s_add_u32 s20, s20, s3
    s_addc_u32 s21, s21, 0
    s_sub_u32 s20, s20, 384
    s_subb_u32 s21, s21, 0
    s_add_u32 s22, s22, s3
    s_addc_u32 s23, s23, 0
    s_sub_u32 s22, s22, 480
    s_subb_u32 s23, s23, 0
    v_mov_b32 v170, s14
    v_mov_b32 v171, s15
    v_mov_b32 v172, 0x3000
    v_mov_b32 v173, 0
    s_mov_b32 exec_lo, 0xff000000
    v_mov_b32 v170, s20
    v_mov_b32 v171, s21
    v_mov_b32 v172, 0xc00
    s_mov_b32 exec_lo, 0xc0000000
    v_mov_b32 v170, s22
    v_mov_b32 v171, s23
    s_mov_b32 exec_lo, -1
    s_mov_b32 exec_hi, 0xf
    v_lshlrev_b32 v4, 4, v1
    v_add_co_u32 v170, vcc, v170, v4
    v_addc_co_u32 v171, vcc, 0, v171, vcc
    ''')
    def wload(row):
        a.vmem('global_load_dwordx4 %s, v[170:171], off%s' % (r4(112 + row * 4), wnt), 'W%d' % row)
        if row < 9:
            a('v_lshl_add_u64 v[170:171], v[172:173], 0, v[170:171]')
    wq = list(range(10))
    def wfeed(k):
        while k > 0 and wq:
            wload(wq.pop(0))
            k -= 1
        if k > 0:
            a('s_mov_b32 exec_hi, -1')
            st.feed(k)
            a('s_mov_b32 exec_hi, 0xf')
    wfeed(o.w1)
    a('s_mov_b64 exec, -1')
    if o.prio:
        a('s_lshr_b32 s3, s4, 2')
        a('s_cmp_eq_u32 s3, 0')
        a('s_cbranch_scc1 L_prio0')
        a('s_setprio 1')
        a('s_branch L_prio1')
        a('L_prio0:')
        a('s_setprio 0')
        a('L_prio1:')
    st.feed(o.k1)
    a('''
    s_add_u32 s40, s12, s34
    s_addc_u32 s41, s13, 0
    s_and_b32 s41, s41, 0xffff
    s_mul_i32 s3, s5, 245760
    s_mul_i32 s62, s6, 160
    s_add_u32 s3, s3, s62
    s_add_u32 s44, s16, s3
    s_addc_u32 s45, s17, 0
    s_and_b32 s45, s45, 0xffff
    s_sub_u32 s46, 245760, s62
    s_mov_b32 s47, 0x20000
    s_mul_i32 s3, s5, 61440
    s_add_u32 s3, s3, s62
    s_add_u32 s48, s24, s3
    s_addc_u32 s49, s25, 0
    s_and_b32 s49, s49, 0xffff
    s_sub_u32 s50, 61440, s62
    s_mov_b32 s51, 0x20000
    s_mov_b32 s56, s28
    s_and_b32 s57, s29, 0xffff
    s_mov_b32 s58, 2560
    s_mov_b32 s59, 0x20000
    s_mov_b32 s92, 0x05040100
    s_mov_b32 s93, 0x07060302
    s_lshl_b32 s94, s5, 3
    s_add_u32 s94, s94, s6
    ''')
    a('''
    v_lshlrev_b32 v174, 5, v1
    s_mul_i32 s3, s4, 2304
    v_add_u32 v174, s3, v174
    v_add_u32 v175, 768, v174
    s_mov_b32 exec_lo, 0xff000000
    v_add_u32 v174, 768, v174
    v_add_u32 v175, 384, v175
    s_mov_b32 exec_lo, -1
    ''')
    for i in range(16):
        a('v_mov_b32 v%d, 0' % (152 + i))
    if o.stamps == 2:
        a('s_memrealtime s[100:101]')
    a('s_waitcnt lgkmcnt(0)')
    if o.stamps == 2:
        a('v_writelane_b32 v254, s100, %d' % len(stamps))
        stamps.append('Wiss')
    stamp('issued0')
    a('s_mov_b32 exec_hi, 0xf')
    for i in range(5):
        a.wait_vm('W%d' % (2 * i + 1))
        if o.stamps == 2 and i in (0, 2, 4):
            stamp('W%d' % (2 * i + 1))
        x0, x1 = 's%d' % (76 + i), 's%d' % (84 + i)
        for d in range(4):
            t0 = 168 if d % 2 == 0 else 192
            ra, rb = 112 + (2 * i) * 4 + d, 112 + (2 * i + 1) * 4 + d
            a('v_perm_b32 v%d, v%d, v%d, s92' % (t0, rb, ra))
            a('v_perm_b32 v%d, v%d, v%d, s93' % (t0 + 1, rb, ra))
            a('v_dot2c_f32_bf16 v%d, %s, v%d' % (152 + 2 * d, x0, t0))
            a('v_dot2c_f32_bf16 v%d, %s, v%d' % (160 + 2 * d, x1, t0))
            a('v_dot2c_f32_bf16 v%d, %s, v%d' % (153 + 2 * d, x0, t0 + 1))
            a('v_dot2c_f32_bf16 v%d, %s, v%d' % (161 + 2 * d, x1, t0 + 1))
        wfeed(o.kp if wq or o.w1 < 10 else o.kp)
    a('''
    ds_write_b128 v174, v[152:155] offset:%d
    ds_write_b128 v174, v[156:159] offset:%d
    ds_write_b128 v175, v[160:163] offset:%d
    ds_write_b128 v175, v[164:167] offset:%d
    s_mov_b32 exec_hi, -1
    ''' % (L_P, L_P + 16, L_P, L_P + 16))
    a('s_add_u32 s81, s81, 0x%x' % TAGSTEP)
    a('v_mov_b32 v3, s81')
    st.feed(o.kb)
    a('s_waitcnt lgkmcnt(0)\ns_barrier')
    if o.prio:
        a('s_setprio 0')
    stamp('bar1')
    a('''
    s_cmp_gt_u32 s4, 2
    s_cbranch_scc1 L_after_pub0
    s_mul_i32 s3, s4, 768
    v_lshl_add_u32 v4, v1, 2, s3
    ''')
    for n in range(0, 24, 2):
        offs = [(m // 3) * 9 + (m % 3) for m in (n, n + 1)]
        a('ds_read2st64_b32 %s, v4 offset0:%d offset1:%d' % (r2(112 + n), offs[0], offs[1]))
    a('''
    s_mul_i32 s3, s94, 3072
    s_lshl_b32 s62, s4, 10
    s_add_u32 s3, s3, s62
    s_add_u32 s3, s3, %d
    v_lshlrev_b32 v5, 4, v1
    v_mov_b32 v139, v3
    s_waitcnt lgkmcnt(0)
    ''' % WS_H0)
    for base in (0, 6, 12, 18):
        for k in range(3):
            a('v_add_f32 v%d, v%d, v%d' % (112 + base + k, 112 + base + k, 112 + base + 3 + k))
    for base in (0, 12):
        for k in range(3):
            a('v_add_f32 v%d, v%d, v%d' % (112 + base + k, 112 + base + k, 112 + base + 6 + k))
    for k in range(3):
        a('v_add_f32 v%d, v%d, v%d' % (136 + k, 112 + k, 124 + k))
    a.vmem('buffer_store_dwordx4 v[136:139], v5, s[52:55], s3 offen sc1', 'P0', False)
    a('L_after_pub0:')
    stamp('pub0')
    a('''
    v_mul_u32_u24 v10, 3072, v8
    s_lshl_b32 s3, s4, 7
    v_lshl_add_u32 v11, v9, 4, s3
    v_add_u32 v10, v10, v11
    s_mul_i32 s95, s5, 24576
    s_add_u32 s95, s95, %d
    s_lshl_b32 s3, s7, 10
    s_add_u32 s96, s95, s3
    ''' % WS_H0)
    a('''
    s_mov_b32 s60, s8
    s_and_b32 s61, s9, 0xffff
    s_mov_b32 s62, 2560
    s_mov_b32 s63, 0x20000
    s_mov_b32 s64, s26
    s_and_b32 s65, s27, 0xffff
    s_mov_b32 s66, 1280
    s_mov_b32 s67, 0x20000
    s_mul_i32 s3, s4, 160
    v_and_b32 v4, 31, v1
    v_lshl_add_u32 v5, v4, 3, s3
    v_lshrrev_b32 v6, 5, v1
    v_mul_u32_u24 v6, 1280, v6
    v_add_u32 v6, v5, v6
    v_cmp_lt_u32 vcc, 19, v4
    v_mov_b32 v7, 0x10000
    v_cndmask_b32 v5, v5, v7, vcc
    ''')
    a.vmem('buffer_load_dwordx2 v[176:177], v6, s[60:63], 0 offen' + wnt, 'GX')
    a.vmem('buffer_load_dwordx2 v[178:179], v5, s[64:67], 0 offen' + wnt, 'GW')
    st.pfeed(o.f1)
    a('''
    v_and_b32 v12, 1, v9
    v_lshlrev_b32 v12, 4, v12
    v_mov_b32 v13, 0xffff
    v_lshlrev_b32 v13, v12, v13
    v_lshrrev_b32 v12, 1, v9
    ''')
    for r in range(4):
        a('v_cmp_eq_u32 vcc, %d, v12' % r)
        a('v_cndmask_b32 v%d, 0, v13, vcc' % (4 + r))
    a('''
    v_lshrrev_b32 v12, 5, v1
    v_mul_u32_u24 v12, 768, v12
    v_bfe_u32 v13, v1, 4, 1
    v_and_b32 v14, 8, v1
    v_cmp_ne_u32 vcc, 0, v14
    v_cndmask_b32 v13, v13, 2, vcc
    v_lshl_add_u32 v12, v13, 8, v12
    v_lshl_add_u32 v12, v9, 2, v12
    s_lshl_b32 s3, s4, 5
    v_add_u32 v12, s3, v12
    ''')
    for g in range(8):
        a('v_mov_b32 v%d, 0' % (S + g))
    st.pace_until(o.gq, D)
    a.vmem('buffer_load_dwordx4 v[240:243], v10, s[52:55], s96 offen sc1', 'GQ')
    a.vmem('buffer_load_dwordx4 v[244:247], v10, s[52:55], s95 offen offset:2048 sc1', 'GF')
    a.wait_vm('GW')
    for d in range(2):
        a('''
        v_lshlrev_b32 v180, 16, v{x}
        v_and_b32 v181, 0xffff0000, v{x}
        v_lshlrev_b32 v182, 16, v{w}
        v_and_b32 v183, 0xffff0000, v{w}
        v_mul_f32 v180, v180, v182
        v_mul_f32 v181, v181, v183
        v_cvt_pk_bf16_f32 v180, v180, v181
        v_and_b32 v{o1}, 0xffff0000, v180
        v_lshlrev_b32 v{o0}, 16, v180
        '''.format(x=176 + d, w=178 + d, o0=184 + 2 * d, o1=185 + 2 * d))
    a('''
    v_lshrrev_b32 v189, 5, v1
    s_lshl_b32 s3, s4, 2
    v_lshl_add_u32 v189, v189, 5, s3
    v_add_f32 v184, v184, v185
    v_add_f32 v186, v186, v187
    v_add_f32 v184, v184, v186
    v_add_f32_dpp v184, v184, v184 row_ror:8 row_mask:0xf bank_mask:0xf
    v_add_f32_dpp v184, v184, v184 row_ror:4 row_mask:0xf bank_mask:0xf
    v_add_f32_dpp v184, v184, v184 quad_perm:[2,3,0,1] row_mask:0xf bank_mask:0xf
    v_add_f32_dpp v184, v184, v184 quad_perm:[1,0,3,2] row_mask:0xf bank_mask:0xf
    v_mov_b32 v185, v184
    v_permlane16_swap_b32 v184, v185
    v_add_f32 v184, v184, v185
    s_mov_b32 exec_lo, 1
    s_mov_b32 exec_hi, 1
    ds_write_b32 v189, v184 offset:%d
    s_mov_b64 exec, -1
    ''' % L_G)
    stamp('issued1')
    st.pace_until(o.gq + D - 2, D)
    a.wait_vm('GF')
    a('L_chk0:')
    a('''
    v_cmp_ne_u32 vcc, v243, v3
    v_cmp_ne_u32 s[98:99], v247, v3
    s_or_b64 vcc, vcc, s[98:99]
    s_cbranch_vccz L_ok0
    buffer_load_dwordx4 v[240:243], v10, s[52:55], s96 offen sc1
    buffer_load_dwordx4 v[244:247], v10, s[52:55], s95 offen offset:2048 sc1
    s_waitcnt vmcnt(0)
    ''')
    spin('L_chk0')
    a('L_ok0:')
    stamp('gath0')
    a('''
    v_permlane32_swap_b32 v240, v244
    v_permlane32_swap_b32 v241, v245
    v_permlane32_swap_b32 v242, v246
    v_add_f32 v240, v240, v244
    v_add_f32 v241, v241, v245
    v_add_f32 v242, v242, v246
    v_mov_b32 v243, v242
    v_permlane16_swap_b32 v240, v241
    v_permlane16_swap_b32 v242, v243
    v_add_f32 v240, v240, v241
    v_add_f32 v242, v242, v243
    v_add_f32_dpp v244, v240, v240 row_ror:8 row_mask:0xf bank_mask:0x3
    v_add_f32_dpp v244, v242, v242 row_ror:8 row_mask:0xf bank_mask:0xc
    ds_write_b32 v12, v244 offset:%d
    v_lshlrev_b32 v13, 5, v9
    v_min_u32 v14, 5, v8
    s_mul_i32 s3, s4, 6
    v_add_u32 v14, s3, v14
    v_bfe_u32 v15, v1, 2, 1
    v_mul_u32_u24 v11, 96, v15
    v_add_lshl_u32 v14, v14, v11, 2
    v_lshlrev_b32 v15, 5, v15
    ''' % L_QF)
    st.feed(o.f2)
    a('s_waitcnt lgkmcnt(0)\ns_barrier')
    qt = [(240, 244), (220, 224), (228, 248)]
    for t in range(3):
        a('ds_read_b128 %s, v13 offset:%d' % (r4(qt[t][0]), L_QF + t * 256))
        a('ds_read_b128 %s, v13 offset:%d' % (r4(qt[t][1]), L_QF + t * 256 + 16))
    a('ds_read_b32 v10, v14 offset:%d' % (L_QF + 768))
    a('ds_read_b32 v11, v14 offset:%d' % (L_QF + 768 + 192))
    a('ds_read_b128 v[192:195], v15 offset:%d' % L_G)
    a('ds_read_b128 v[196:199], v15 offset:%d' % (L_G + 16))
    st.pfeed(o.f3)
    a('s_waitcnt lgkmcnt(0)')
    for t in range(3):
        for d in range(4):
            src = qt[t][d // 2] + (d % 2) * 2
            a('v_cvt_pk_bf16_f32 v%d, v%d, v%d' % (Q + t * 4 + d, src, src + 1))
    stamp('bar2')
    a('''
    v_add_f32 v192, v192, v193
    v_add_f32 v194, v194, v195
    v_add_f32 v196, v196, v197
    v_add_f32 v198, v198, v199
    v_add_f32 v192, v192, v194
    v_add_f32 v196, v196, v198
    v_add_f32 v252, v192, v196
    ''')
    bf16r(252, 252)
    a('''
    v_mul_f32 v252, 0x%x, v252
    v_exp_f32 v252, v252
    v_add_f32 v252, 1.0, v252
    v_rcp_f32 v252, v252
    ''' % (LOG2E | 0x80000000))
    bf16r(252, 252)
    a('v_sub_f32 v253, 1.0, v252')
    bf16r(253, 253)
    bf16r(10, 10)
    bf16r(11, 11)
    a('''
    v_mul_f32 v12, 0x%x, v10
    v_exp_f32 v12, v12
    v_add_f32 v12, 1.0, v12
    v_rcp_f32 v12, v12
    v_mul_f32 v10, v10, v12
    ''' % (LOG2E | 0x80000000))
    bf16r(10, 10)
    a('v_mul_f32 v10, v10, v11')
    bf16r(10, 10)
    a('v_mul_f32 v10, v10, v253')
    a('v_mov_b32 v11, v252')
    st.pfeed(o.f3)
    for g0 in range(0, 8, 2):
        st.need(3 * g0 + 5, D)
        for t in range(3):
            for d in range(4):
                for gg in range(2):
                    a('v_dot2c_f32_bf16 v%d, v%d, v%d' % (S + g0 + gg, K(g0 + gg, t, d), Q + t * 4 + d))
        if g0 < 6:
            st.pfeed(o.f4)
    stamp('qk')
    for ctl in ('quad_perm:[1,0,3,2]', 'quad_perm:[2,3,0,1]', 'row_half_mirror'):
        for g in range(8):
            a('v_add_f32_dpp v%d, v%d, v%d %s row_mask:0xf bank_mask:0xf' % (S + g, S + g, S + g, ctl))
    st.pfeed(o.fa)
    for g in range(0, 8, 2):
        a('v_cvt_pk_bf16_f32 v%d, v%d, v%d' % (240 + g // 2, S + g, S + g + 1))
    for g in range(0, 8, 2):
        a('v_lshlrev_b32 v%d, 16, v%d' % (S + g, 240 + g // 2))
        a('v_and_b32 v%d, 0xffff0000, v%d' % (S + g + 1, 240 + g // 2))
    for g in range(8):
        a('v_mul_f32 v%d, 0x%x, v%d' % (S + g, SCALE, S + g))
    for g in range(0, 8, 2):
        a('v_cvt_pk_bf16_f32 v%d, v%d, v%d' % (240 + g // 2, S + g, S + g + 1))
    for g in range(0, 8, 2):
        a('v_lshlrev_b32 v%d, 16, v%d' % (S + g, 240 + g // 2))
        a('v_and_b32 v%d, 0xffff0000, v%d' % (S + g + 1, 240 + g // 2))
    a('''
    v_max3_f32 v240, v232, v233, v234
    v_max3_f32 v241, v235, v236, v237
    v_max3_f32 v240, v240, v238, v239
    v_max_f32 v240, v240, v241
    v_max_f32_dpp v240, v240, v240 row_ror:8 row_mask:0xf bank_mask:0xf
    v_mov_b32 v241, v240
    v_permlane16_swap_b32 v240, v241
    v_max_f32 v240, v240, v241
    v_mov_b32 v241, v240
    v_permlane32_swap_b32 v240, v241
    v_max_f32 v240, v240, v241
    s_lshl_b32 s3, s4, 2
    v_mov_b32 v14, s3
    v_mov_b32 v15, 0
    s_mov_b64 exec, 1
    ds_write_b32 v14, v240 offset:%d
    s_mov_b64 exec, -1
    ''' % L_MX)
    st.feed(o.oa)
    a('''
    s_waitcnt lgkmcnt(0)
    s_barrier
    ds_read_b128 v[240:243], v15 offset:%d
    ds_read_b128 v[244:247], v15 offset:%d
    s_waitcnt lgkmcnt(0)
    v_max3_f32 v240, v240, v241, v242
    v_max3_f32 v244, v243, v244, v245
    v_max3_f32 v240, v240, v246, v247
    v_max_f32 v248, v240, v244
    ''' % (L_MX, L_MX + 16))
    st.pfeed(o.fb)
    for g in range(8):
        a('v_sub_f32 v%d, v%d, v248' % (S + g, S + g))
    for g in range(8):
        a('v_mul_f32 v%d, 0x%x, v%d' % (S + g, LOG2E, S + g))
    for g in range(8):
        a('v_exp_f32 v%d, v%d' % (S + g, S + g))
    a('''
    v_add_f32 v240, v232, v233
    v_add_f32 v241, v234, v235
    v_add_f32 v242, v236, v237
    v_add_f32 v243, v238, v239
    v_add_f32 v240, v240, v241
    v_add_f32 v242, v242, v243
    v_add_f32 v240, v240, v242
    v_add_f32_dpp v240, v240, v240 row_ror:8 row_mask:0xf bank_mask:0xf
    v_mov_b32 v241, v240
    v_permlane16_swap_b32 v240, v241
    v_add_f32 v240, v240, v241
    v_mov_b32 v241, v240
    v_permlane32_swap_b32 v240, v241
    v_add_f32 v240, v240, v241
    s_mov_b64 exec, 1
    ds_write_b32 v14, v240 offset:%d
    s_mov_b64 exec, -1
    ''' % L_LS)
    for g in range(8):
        a('v_cvt_pk_bf16_f32 v%d, v%d, v%d' % (S + g, S + g, S + g))
    st.feed(o.ob)
    a('s_waitcnt lgkmcnt(0)')
    a('s_barrier')
    a('''
    s_cmp_lg_u32 s4, 0
    s_cbranch_scc1 L_noml
    ds_read_b128 v[240:243], v15 offset:%d
    ds_read_b128 v[244:247], v15 offset:%d
    s_lshl_b32 s3, s94, 4
    s_add_u32 s3, s3, %d
    v_mov_b32 v250, 0
    v_mov_b32 v251, v3
    s_waitcnt lgkmcnt(0)
    v_add_f32 v240, v240, v241
    v_add_f32 v242, v242, v243
    v_add_f32 v244, v244, v245
    v_add_f32 v246, v246, v247
    v_add_f32 v240, v240, v242
    v_add_f32 v244, v244, v246
    v_add_f32 v249, v240, v244
    s_mov_b64 exec, 1
    ''' % (L_LS, L_LS + 16, WS_ML))
    a.vmem('buffer_store_dwordx4 v[248:251], off, s[52:55], s3 sc1', 'ML', False)
    a('s_mov_b64 exec, -1')
    a('L_noml:')
    st.pfeed(o.fc)
    a('''
    v_lshlrev_b32 v12, 3, v8
    s_lshr_b32 s3, s4, 2
    s_lshl_b32 s3, s3, 1
    s_and_b32 s62, s4, 1
    s_add_u32 s3, s3, s62
    s_and_b32 s62, s4, 2
    s_lshl_b32 s62, s62, 1
    s_add_u32 s3, s3, s62
    v_add_u32 v12, s3, v12
    v_mul_u32_u24 v12, 1280, v12
    v_lshl_add_u32 v109, v9, 2, v12
    v_lshl_add_u32 v108, v9, 4, v12
    s_mov_b32 s97, 81920
    s_mov_b32 s100, 163840
    s_mul_i32 s3, s4, 6
    v_add_u32 v12, s3, v8
    v_mul_u32_u24 v12, 1280, v12
    v_cmp_lt_u32 vcc, 5, v8
    v_cndmask_b32 v12, v12, 2.0, vcc
    v_lshl_add_u32 v111, v9, 2, v12
    v_lshl_add_u32 v110, v9, 4, v12
    ''')
    for g in range(8):
        for r in range(4):
            a('v_and_b32 v%d, v%d, v%d' % (16 + g * 4 + r, S + g, 4 + r))
    st.pfeed(o.fd)
    a('''
    v_lshlrev_b32 v4, 4, v1
    s_lshl_b32 s3, s4, 10
    v_add_u32 v5, s3, v4
    v_lshlrev_b32 v6, 4, v9
    v_lshlrev_b32 v7, 10, v9
    v_lshl_add_u32 v7, v8, 4, v7
    s_lshl_b32 s3, s4, 7
    v_add_u32 v7, s3, v7
    s_lshl_b32 s95, s5, 7
    s_add_u32 s95, s95, %d
    s_lshl_b32 s96, s5, 13
    s_add_u32 s96, s96, %d
    s_lshl_b32 s62, s94, 10
    s_add_u32 s62, s62, %d
    ''' % (WS_ML, WS_H1, WS_H1))
    st.pfeed(o.fd)
    for i in range(20):
        a('v_mov_b32 v%d, 0' % (88 + i))
    stamp('soft')
    def split_weights():
        a.wait_vm('GML')
        a('L_chkml:')
        a('''
        v_cmp_ne_u32 vcc, v251, v3
        s_cbranch_vccz L_okml
        buffer_load_dwordx4 v[248:251], v6, s[52:55], s95 offen sc1
        s_waitcnt vmcnt(0)
        ''')
        spin('L_chkml')
        a('L_okml:')
        a('''
        v_max_f32_dpp v12, v248, v248 quad_perm:[1,0,3,2] row_mask:0xf bank_mask:0xf
        v_max_f32_dpp v12, v12, v12 quad_perm:[2,3,0,1] row_mask:0xf bank_mask:0xf
        v_sub_f32 v12, v248, v12
        v_mul_f32 v12, 0x%x, v12
        v_exp_f32 v12, v12
        v_mul_f32 v13, v12, v249
        v_add_f32_dpp v13, v13, v13 quad_perm:[1,0,3,2] row_mask:0xf bank_mask:0xf
        v_add_f32_dpp v13, v13, v13 quad_perm:[2,3,0,1] row_mask:0xf bank_mask:0xf
        v_rcp_f32 v13, v13
        v_mul_f32 v12, v12, v11
        v_mul_f32 v12, v12, v13
        ''' % LOG2E)
    gml = max(o.gml, st.n - 24)
    late_ml = gml >= 21
    st.hooks[24 + gml] = lambda: a.vmem('buffer_load_dwordx4 v[248:251], v6, s[52:55], s95 offen sc1', 'GML')
    done_ml = False
    for g in range(8):
        st.need(24 + 3 * g + 2, D)
        if g == 7:
            st.feed(8)
        for t in range(3):
            c = '0' if g == 0 else r4(O + 4 * t)
            a('v_mfma_f32_16x16x32_bf16 %s, %s, %s, %s' % (r4(O + 4 * t), r4(16 + 4 * g), r4(V(g, t)), c))
        if not done_ml and 3 * g + 2 > gml and not late_ml:
            split_weights()
            done_ml = True
    assert done_ml or late_ml
    stamp('pv')
    for t in range(3):
        a('v_permlane32_swap_b32 v%d, v%d' % (O + 4 * t, O + 4 * t + 2))
        a('v_permlane32_swap_b32 v%d, v%d' % (O + 4 * t + 1, O + 4 * t + 3))
    for t in range(3):
        a('v_add_f32_dpp v%d, v%d, v%d row_ror:8 row_mask:0xf bank_mask:0x3' % (240 + t, O + 4 * t + 2, O + 4 * t))
    for t in range(3):
        a('v_add_f32_dpp v%d, v%d, v%d row_ror:8 row_mask:0xf bank_mask:0xc' % (240 + t, O + 4 * t + 1, O + 4 * t + 3))
    a('''
    ds_write_b128 v5, v[240:243] offset:%d
    s_waitcnt lgkmcnt(0)
    s_barrier
    s_cmp_lg_u32 s4, 0
    s_cbranch_scc1 L_nopub1
    ''' % L_OP)
    for w in range(8):
        a('ds_read_b128 %s, v4 offset:%d' % (r4(112 + 4 * w), L_OP + w * 1024))
    a('v_mov_b32 v147, v3')
    a('s_waitcnt lgkmcnt(0)')
    for base in (0, 8, 16, 24):
        for k in range(3):
            a('v_add_f32 v%d, v%d, v%d' % (112 + base + k, 112 + base + k, 116 + base + k))
    for base in (0, 16):
        for k in range(3):
            a('v_add_f32 v%d, v%d, v%d' % (112 + base + k, 112 + base + k, 120 + base + k))
    for k in range(3):
        a('v_add_f32 v%d, v%d, v%d' % (144 + k, 112 + k, 128 + k))
    a.vmem('buffer_store_dwordx4 v[144:147], v4, s[52:55], s62 offen sc1', 'P1', False)
    a('L_nopub1:')
    a.vmem('buffer_load_dwordx4 v[244:247], v7, s[52:55], s96 offen sc1', 'GO')
    stamp('pub1')
    if late_ml:
        split_weights()
    a.wait_vm('WO7')
    for pr in range(2):
        for d in range(5):
            ra = (48 + 8 * pr + d) if d < 4 else 64 + 2 * pr
            rb = (52 + 8 * pr + d) if d < 4 else 65 + 2 * pr
            a('v_perm_b32 v%d, v%d, v%d, s92' % (68 + 10 * pr + 2 * d, rb, ra))
            a('v_perm_b32 v%d, v%d, v%d, s93' % (69 + 10 * pr + 2 * d, rb, ra))
    a('s_waitcnt vmcnt(0)')
    a('L_chk1:')
    a('''
    v_cmp_ne_u32 vcc, v247, v3
    s_cbranch_vccz L_ok1
    buffer_load_dwordx4 v[244:247], v7, s[52:55], s96 offen sc1
    s_waitcnt vmcnt(0)
    ''')
    spin('L_chk1')
    a('L_ok1:')
    stamp('gath1')
    for t in range(3):
        a('v_mul_f32 v%d, v%d, v12' % (244 + t, 244 + t))
    for ctl in ('quad_perm:[1,0,3,2]', 'quad_perm:[2,3,0,1]'):
        for t in range(3):
            a('v_add_f32_dpp v%d, v%d, v%d %s row_mask:0xf bank_mask:0xf' % (244 + t, 244 + t, 244 + t, ctl))
    a('''
    v_cvt_pk_bf16_f32 v240, v244, v245
    v_cvt_pk_bf16_f32 v241, v246, v10
    v_mov_b32_dpp v242, v240 row_half_mirror row_mask:0xf bank_mask:0xf
    v_mov_b32_dpp v243, v241 row_half_mirror row_mask:0xf bank_mask:0xf
    ''')
    for n in range(10):
        a('v_dot2c_f32_bf16 v%d, v%d, v240' % (88 + n, 68 + n))
    for n in range(10):
        a('v_dot2c_f32_bf16 v%d, v%d, v242' % (98 + n, 68 + n))
    for n in range(10):
        a('v_dot2c_f32_bf16 v%d, v%d, v241' % (88 + n, 78 + n))
    for n in range(10):
        a('v_dot2c_f32_bf16 v%d, v%d, v243' % (98 + n, 78 + n))
    for n in range(10):
        a('v_permlane32_swap_b32 v%d, v%d' % (88 + n, 98 + n))
    for n in range(10):
        a('v_add_f32 v%d, v%d, v%d' % (88 + n, 88 + n, 98 + n))
    for n in range(5):
        a('v_permlane16_swap_b32 v%d, v%d' % (88 + n, 93 + n))
    for n in range(5):
        a('v_add_f32 v%d, v%d, v%d' % (88 + n, 88 + n, 93 + n))
    a('''
    v_add_f32_dpp v240, v88, v88 row_ror:8 row_mask:0xf bank_mask:0x3
    v_add_f32_dpp v241, v90, v90 row_ror:8 row_mask:0xf bank_mask:0x3
    v_add_f32_dpp v242, v92, v92 row_ror:8 row_mask:0xf bank_mask:0xf
    v_add_f32_dpp v240, v89, v89 row_ror:8 row_mask:0xf bank_mask:0xc
    v_add_f32_dpp v241, v91, v91 row_ror:8 row_mask:0xf bank_mask:0xc
    ds_write_b128 v5, v[240:243] offset:%d
    s_waitcnt lgkmcnt(0)
    s_barrier
    s_cmp_lg_u32 s4, 0
    s_cbranch_scc1 L_wave_done
    ''' % L_YP)
    for w in range(8):
        a('ds_read_b128 %s, v4 offset:%d' % (r4(112 + 4 * w), L_YP + w * 1024))
    a('''
    v_mov_b32 v147, v3
    s_lshl_b32 s3, s6, 15
    s_add_u32 s96, s3, %d
    s_lshl_b32 s3, s5, 10
    s_add_u32 s62, s96, s3
    v_lshrrev_b32 v6, 1, v1
    v_lshlrev_b32 v6, 10, v6
    v_and_b32 v7, 1, v1
    v_lshl_add_u32 v6, v7, 4, v6
    s_lshl_b32 s3, s5, 5
    v_add_u32 v6, s3, v6
    s_waitcnt lgkmcnt(0)
    ''' % WS_H2)
    for base in (0, 8, 16, 24):
        for k in range(3):
            a('v_add_f32 v%d, v%d, v%d' % (112 + base + k, 112 + base + k, 116 + base + k))
    for base in (0, 16):
        for k in range(3):
            a('v_add_f32 v%d, v%d, v%d' % (112 + base + k, 112 + base + k, 120 + base + k))
    for k in range(3):
        a('v_add_f32 v%d, v%d, v%d' % (144 + k, 112 + k, 128 + k))
    a.vmem('buffer_store_dwordx4 v[144:147], v4, s[52:55], s62 offen sc1', 'P2', False)
    a.vmem('buffer_load_dwordx4 v[244:247], v6, s[52:55], s96 offen sc1', 'GY', False)
    stamp('pub2')
    a('''
    s_lshr_b32 s76, s5, 3
    s_and_b32 s76, s76, 1
    s_mul_i32 s76, s76, 5
    s_lshr_b32 s77, s5, 2
    s_and_b32 s77, s77, 1
    s_lshr_b32 s78, s5, 4
    s_lshr_b32 s79, s5, 1
    s_xor_b32 s78, s78, s79
    s_and_b32 s78, s78, 1
    s_mul_i32 s78, s78, 640
    s_mul_i32 s79, s6, 80
    s_add_u32 s78, s78, s79
    s_and_b32 s79, s5, 3
    s_lshl_b32 s79, s79, 1
    s_add_u32 s80, s76, s77
    s_add_u32 s81, s76, 4
    v_add_u32 v8, s79, v7
    v_lshrrev_b32 v9, 5, v1
    v_lshlrev_b32 v9, 1, v9
    v_add_u32 v9, s80, v9
    v_mov_b32 v13, s81
    v_and_b32 v12, 16, v1
    v_cmp_ne_u32 vcc, 0, v12
    v_cndmask_b32 v9, v9, v13, vcc
    v_lshl_add_u32 v12, v8, 3, v9
    v_lshl_add_u32 v13, v8, 1, v9
    v_add_u32 v13, 56, v13
    v_cmp_lt_u32 vcc, 7, v9
    v_cndmask_b32 v12, v12, v13, vcc
    v_add_lshl_u32 v12, s78, v12, 1
    s_mov_b32 s84, 3
    s_cmp_eq_u32 s77, 0
    s_cselect_b32 s85, 0x30003, s84
    s_waitcnt vmcnt(0)
    ''')
    a('L_chk2:')
    a('''
    v_cmp_ne_u32 vcc, v247, v3
    s_cbranch_vccz L_ok2
    buffer_load_dwordx4 v[244:247], v6, s[52:55], s96 offen sc1
    s_waitcnt vmcnt(0)
    ''')
    spin('L_chk2')
    a('L_ok2:')
    stamp('gath2')
    a('''
    v_mov_b32 v247, v246
    v_permlane32_swap_b32 v244, v245
    v_permlane32_swap_b32 v246, v247
    v_add_f32 v244, v244, v245
    v_add_f32 v246, v246, v247
    v_permlane16_swap_b32 v244, v246
    v_add_f32 v244, v244, v246
    v_add_f32_dpp v244, v244, v244 row_ror:8 row_mask:0xf bank_mask:0xf
    v_add_f32_dpp v244, v244, v244 row_ror:4 row_mask:0xf bank_mask:0xf
    v_add_f32_dpp v244, v244, v244 quad_perm:[2,3,0,1] row_mask:0xf bank_mask:0xf
    v_cvt_pk_bf16_f32 v244, v244, v244
    s_mov_b32 exec_lo, s85
    s_mov_b32 exec_hi, 3
    buffer_store_short v244, v12, s[56:59], 0 offen
    s_cmp_lg_u32 s2, 0
    s_cbranch_scc1 L_wave_done
    s_mov_b64 exec, 1
    buffer_store_dword v3, off, s[52:55], 0 sc1
    ''')
    a('L_wave_done:')
    if o.stamps:
        a('s_mov_b64 exec, -1')
        a('s_waitcnt vmcnt(0)')
        stamp('end')
        a('''
        s_lshl_b32 s3, s2, 3
        s_add_u32 s3, s3, s4
        s_lshl_b32 s3, s3, 7
        s_add_u32 s3, s3, %d
        s_getreg_b32 s62, hwreg(HW_REG_XCC_ID)
        v_writelane_b32 v254, s62, 31
        v_lshlrev_b32 v4, 2, v1
        s_mov_b32 exec_lo, -1
        s_mov_b32 exec_hi, 0
        buffer_store_dword v254, v4, s[52:55], s3 offen
        ''' % WS_ST)
        if o.dbg:
            keep = [stamps.index(n) for n in o.dbg.split(',')]
            a('s_mov_b32 s60, s30\ns_and_b32 s61, s31, 0xffff\ns_mov_b32 s62, 256\ns_mov_b32 s63, 0x20000')
            a('v_mov_b32 v5, 0x1000')
            a('v_mov_b32 v6, 0x1000')
            a('v_mov_b32 v7, v254')
            for n, k in enumerate(keep):
                a('v_writelane_b32 v5, %d, %d' % (4 * n, k))
            a('v_writelane_b32 v6, %d, %d' % (4 * len(keep), 0))
            a('v_not_b32 v8, v254')
            a('buffer_atomic_umax v7, v5, s[60:63], 0 offen sc1')
            a('buffer_atomic_umax v8, v6, s[60:63], 0 offen sc1')
            a('s_waitcnt vmcnt(0)')
    a('L_end:')
    a('s_endpgm')

    body = a.text()
    src = wrap(body, L_END)
    return src, stamps, a.pads


def parser():
    p = argparse.ArgumentParser()
    p.add_argument('-o', default='cdna_kernels/%s.s' % NAME)
    p.add_argument('--nt', type=int, default=1)
    p.add_argument('--wnt', type=int, default=1)
    for k, d in dict(w1=5, k1=0, kp=2, kb=0, depth=5, gq=23, f1=1, f2=2, f3=1, f4=1, fa=1, fb=1, fc=1, fd=1, oa=1, ob=0, gml=23, pf=2, prio=0).items():
        p.add_argument('--' + k, type=int, default=d)
    p.add_argument('--interleave', type=int, default=0)
    p.add_argument('--stamps', type=int, default=0)
    p.add_argument('--dbg', default='')
    p.add_argument('--spin', type=int, default=200000)
    return p


if __name__ == '__main__':
    o = parser().parse_args()
    src, stamps, pads = build(o)
    open(o.o, 'w').write(src)
    if o.stamps:
        open(o.o + '.stamps', 'w').write(' '.join(stamps))
    print('wrote', o.o, len(src), 'bytes; pads', pads, stamps)
```

```python
import re, sys
from gen import NAME, HEADER
out, specs = sys.argv[1], sys.argv[2:]
head, text, desc, seen = HEADER, '', '', {}
for sp in specs:
    if sp == 'empty':
        lab = 'empty_kernel'
        head += '; @launch kernel=%s grid=(256,1,1) block=(512,1,1) lds=0\n' % lab
        if lab not in seen:
            seen[lab] = 1
            text += '.globl %s\n.p2align 8\n.type %s,@function\n%s:\n    s_endpgm\n' % (lab, lab, lab)
            desc += '''.p2align 6
.amdhsa_kernel %s
  .amdhsa_next_free_vgpr 8
  .amdhsa_next_free_sgpr 102
  .amdhsa_accum_offset 8
  .amdhsa_group_segment_fixed_size 0
  .amdhsa_kernarg_size 104
  .amdhsa_user_sgpr_count 2
  .amdhsa_user_sgpr_kernarg_segment_ptr 1
  .amdhsa_system_sgpr_workgroup_id_x 1
  .amdhsa_float_denorm_mode_32 3
.end_amdhsa_kernel
''' % lab
        continue
    s = open(sp).read()
    m = re.search(r'; @launch (grid=\S+ block=\S+ lds=\d+)', s)
    if sp not in seen:
        seen[sp] = 'k%d_kernel' % len(seen)
        lab = seen[sp]
        s2 = s.replace(NAME + '_kernel', lab)
        s2 = re.sub(r'\bL_(\w+)', r'L%s_\1' % lab[:2], s2)
        t0 = s2.index('.text\n') + 6
        t1 = s2.index('.section .rodata')
        text += s2[t0:t1]
        desc += s2[s2.index('.p2align 6', t1):]
    head += '; @launch kernel=%s %s\n' % (seen[sp], m.group(1))
open(out, 'w').write(head + '.amdgcn_target "amdgcn-amd-amdhsa--gfx950"\n.text\n' + text + '.section .rodata,"a"\n' + desc)
```
